```python
import torch

def _softmax(x, axis=-1):
    return torch.softmax(x, dim=axis)
def _gelu(x):
    return torch.nn.functional.gelu(x, approximate="tanh")
def _silu(x):
    return torch.nn.functional.silu(x)
def _sigmoid(x):
    return torch.sigmoid(x)
def _layernorm(x, axis=-1, eps=1e-5):
    m = x.mean(dim=axis, keepdim=True)
    v = x.var(dim=axis, keepdim=True, unbiased=False)
    return (x - m) / torch.sqrt(v + eps)
def _scatter_add(tgt, idx, src, axis=0):
    return tgt.clone().index_add_(axis, idx, src)
def _segment_sum(src, seg, n):
    out = torch.zeros((n,) + src.shape[1:], dtype=src.dtype)
    return out.index_add_(0, seg, src)
def _pad(x, pw):
    flat = tuple(v for pair in reversed(pw) for v in pair)
    return torch.nn.functional.pad(x, flat)

kernel_name = 'standalone__channel_attn_se__vision'

def setup_inputs():

    _w = (lambda a: (lambda t: t.to(torch.bfloat16) if t.is_floating_point() else t)(torch.as_tensor(a)))
    H = W = 384
    C = 192
    r = max(C // 16, 4)
    return {
        "x": _w((lambda *s: torch.randn(*s, dtype=torch.bfloat16) * 3.2)(1, H, W, C)),
        "w_down": _w((lambda *s: torch.randn(*s, dtype=torch.bfloat16) * 3.2)(C, r)),
        "w_up": _w((lambda *s: torch.randn(*s, dtype=torch.bfloat16) * 3.2)(r, C)),
    }

def reference(x, w_down, w_up):
    s = x.mean(axis=(1, 2))
    h = _silu(torch.einsum('bc,cr->br', s, w_down))
    g = _sigmoid(torch.einsum('br,rc->bc', h, w_up))
    return x * g[:, None, None, :]
```

```python
import sys, re
real = open(sys.argv[1]).read()
m = re.search(r"; @launch grid=\((\d+),1,1\) block=\((\d+),1,1\) lds=(\d+)", real)
real = real.replace(m.group(0), f"; @launch kernel=probe_kernel grid=(1,1,1) block=(64,1,1) lds=0\n; @launch kernel=standalone__channel_attn_se__vision_kernel grid=({m.group(1)},1,1) block=({m.group(2)},1,1) lds={m.group(3)}")
probe = r'''
.text
.globl probe_kernel
.p2align 8
.type probe_kernel,@function
probe_kernel:
    s_cmp_ge_u32 s2, 1
    s_cbranch_scc1 LP_end
    s_load_dwordx2 s[4:5], s[0:1], 0      ; x
    s_load_dwordx2 s[6:7], s[0:1], 24     ; out
    s_load_dwordx4 s[8:11], s[0:1], 32
    s_getreg_b32 s12, hwreg(HW_REG_XCC_ID)
    s_and_b32 s12, s12, 7
    s_lshr_b32 s13, s12, 2
    s_mov_b64 exec, 1
    s_waitcnt lgkmcnt(0)
'''
def buf(blo, res, sumreg):
    return f'''
    s_mov_b32 s{res}, 0
    s_mov_b32 s{sumreg}, 0
    s_mov_b32 s20, 0                      ; page j
LP_page{res}:
    s_lshl_b32 s21, s20, 21
    s_add_u32 s21, s21, 0x10000
    s_add_u32 s22, s{blo}, s21
    s_and_b32 s23, s22, 0x3fff
    s_sub_u32 s21, s21, s23
    s_sub_u32 s22, s22, s23
    v_mov_b32 v1, s21
    global_load_dword v2, v1, s[{blo}:{blo+1}] offset:3968
    s_waitcnt vmcnt(0)
    s_mov_b32 s24, 0
    s_mov_b32 s25, 0
    s_mov_b32 s26, 0                      ; sample
LP_samp{res}:
    s_lshl_b32 s27, s26, 8
    s_add_u32 s27, s27, s21
    v_mov_b32 v1, s27
    s_add_u32 s27, s27, 8192
    v_mov_b32 v3, s27
    s_memtime s[30:31]
    s_waitcnt lgkmcnt(0)
    global_load_dword v2, v1, s[{blo}:{blo+1}]
    s_waitcnt vmcnt(0)
    s_memtime s[32:33]
    s_waitcnt lgkmcnt(0)
    global_load_dword v2, v3, s[{blo}:{blo+1}]
    s_waitcnt vmcnt(0)
    s_memtime s[34:35]
    s_waitcnt lgkmcnt(0)
    s_sub_u32 s28, s32, s30
    s_sub_u32 s29, s34, s32
    s_min_u32 s28, s28, 1500
    s_min_u32 s29, s29, 1500
    s_add_u32 s24, s24, s28
    s_add_u32 s25, s25, s29
    s_add_u32 s26, s26, 1
    s_cmp_lt_u32 s26, 12
    s_cbranch_scc1 LP_samp{res}
    s_cmp_lt_u32 s24, s25
    s_cselect_b32 s28, 0, 1
    s_xor_b32 s28, s28, s13
    s_lshr_b32 s29, s22, 21
    s_and_b32 s29, s29, 1
    s_xor_b32 s28, s28, s29
    s_lshl_b32 s28, s28, s20
    s_or_b32 s{res}, s{res}, s28
    s_sub_i32 s28, s24, s25
    s_abs_i32 s28, s28
    s_add_u32 s{sumreg}, s{sumreg}, s28
    s_add_u32 s20, s20, 1
    s_cmp_lt_u32 s20, 27
    s_cbranch_scc1 LP_page{res}
'''
probe += buf(4, 40, 43) + buf(6, 41, 44) + buf(10, 42, 45)
probe += '''
    v_mov_b32 v1, 0
'''
vals = ['s12','s40','s41','s42','s43','s44','s45','s4','s5','s6','s7','s10','s11','s8','s9']
for i, v in enumerate(vals):
    probe += f"    v_mov_b32 v2, {v}\n    global_store_dword v1, v2, s[8:9] offset:{4*i}\n    s_nop 1\n"
probe += '''LP_end:
    s_endpgm
.section .rodata,"a"
.p2align 6
.amdhsa_kernel probe_kernel
  .amdhsa_next_free_vgpr 8
  .amdhsa_next_free_sgpr 64
  .amdhsa_accum_offset 8
  .amdhsa_group_segment_fixed_size 0
  .amdhsa_kernarg_size 48
  .amdhsa_user_sgpr_count 2
  .amdhsa_user_sgpr_kernarg_segment_ptr 1
  .amdhsa_system_sgpr_workgroup_id_x 1
.end_amdhsa_kernel
'''
open(sys.argv[2], 'w').write(real + probe)
```

```python
import sys, re
real = open(sys.argv[1]).read()
m = re.search(r"; @launch grid=\((\d+),1,1\) block=\((\d+),1,1\) lds=(\d+)", real)
real = real.replace(m.group(0), f"; @launch kernel=probe_kernel grid=(1,1,1) block=(64,1,1) lds=0\n; @launch kernel=standalone__channel_attn_se__vision_kernel grid=({m.group(1)},1,1) block=({m.group(2)},1,1) lds={m.group(3)}\n; @launch kernel=report_kernel grid=(1,1,1) block=(64,1,1) lds=0")
probe = r'''
.text
.globl probe_kernel
.p2align 8
.type probe_kernel,@function
probe_kernel:
    s_cmp_ge_u32 s2, 1
    s_cbranch_scc1 LP_end
    s_load_dwordx2 s[4:5], s[0:1], 0      ; x
    s_load_dwordx2 s[6:7], s[0:1], 24     ; out
    s_load_dwordx4 s[8:11], s[0:1], 32
    s_getreg_b32 s12, hwreg(HW_REG_XCC_ID)
    s_and_b32 s12, s12, 7
    s_lshr_b32 s13, s12, 2
    s_mov_b64 exec, 1
    s_waitcnt lgkmcnt(0)
'''
def buf(blo, res, sumreg):
    return f'''
    s_mov_b32 s{res}, 0
    s_mov_b32 s{sumreg}, 0
    s_mov_b32 s20, 0                      ; page j
LP_page{res}:
    s_lshl_b32 s21, s20, 21
    s_add_u32 s21, s21, 0x10000
    s_add_u32 s22, s{blo}, s21
    s_and_b32 s23, s22, 0x3fff
    s_sub_u32 s21, s21, s23
    s_sub_u32 s22, s22, s23
    v_mov_b32 v1, s21
    global_load_dword v2, v1, s[{blo}:{blo+1}] offset:3968
    s_waitcnt vmcnt(0)
    s_mov_b32 s24, 0
    s_mov_b32 s25, 0
    s_mov_b32 s26, 0                      ; sample
LP_samp{res}:
    s_lshl_b32 s27, s26, 8
    s_add_u32 s27, s27, s21
    v_mov_b32 v1, s27
    s_add_u32 s27, s27, 8192
    v_mov_b32 v3, s27
    s_memtime s[30:31]
    s_waitcnt lgkmcnt(0)
    global_load_dword v2, v1, s[{blo}:{blo+1}]
    s_waitcnt vmcnt(0)
    s_memtime s[32:33]
    s_waitcnt lgkmcnt(0)
    global_load_dword v2, v3, s[{blo}:{blo+1}]
    s_waitcnt vmcnt(0)
    s_memtime s[34:35]
    s_waitcnt lgkmcnt(0)
    s_sub_u32 s28, s32, s30
    s_sub_u32 s29, s34, s32
    s_min_u32 s28, s28, 1500
    s_min_u32 s29, s29, 1500
    s_add_u32 s24, s24, s28
    s_add_u32 s25, s25, s29
    s_add_u32 s26, s26, 1
    s_cmp_lt_u32 s26, 12
    s_cbranch_scc1 LP_samp{res}
    s_cmp_lt_u32 s24, s25
    s_cselect_b32 s28, 0, 1
    s_xor_b32 s28, s28, s13
    s_lshr_b32 s29, s22, 21
    s_and_b32 s29, s29, 1
    s_xor_b32 s28, s28, s29
    s_lshl_b32 s28, s28, s20
    s_or_b32 s{res}, s{res}, s28
    s_sub_i32 s28, s24, s25
    s_abs_i32 s28, s28
    s_add_u32 s{sumreg}, s{sumreg}, s28
    s_add_u32 s20, s20, 1
    s_cmp_lt_u32 s20, 27
    s_cbranch_scc1 LP_page{res}
'''
probe += buf(4, 40, 43) + buf(6, 41, 44) + buf(10, 42, 45)
probe += '''
    v_mov_b32 v1, 0x8000000
'''
vals = ['s12','s40','s41','s42','s43','s44','s45','s4','s5','s6','s7','s10','s11','s8','s9']
for i, v in enumerate(vals):
    probe += f"    v_mov_b32 v2, {v}\n    global_store_dword v1, v2, s[10:11] offset:{4*i}\n    s_nop 1\n"
probe += '''LP_end:
    s_endpgm
.section .rodata,"a"
.p2align 6
.amdhsa_kernel probe_kernel
  .amdhsa_next_free_vgpr 8
  .amdhsa_next_free_sgpr 64
  .amdhsa_accum_offset 8
  .amdhsa_group_segment_fixed_size 0
  .amdhsa_kernarg_size 48
  .amdhsa_user_sgpr_count 2
  .amdhsa_user_sgpr_kernarg_segment_ptr 1
  .amdhsa_system_sgpr_workgroup_id_x 1
.end_amdhsa_kernel
'''
probe += """
.text
.globl report_kernel
.p2align 8
.type report_kernel,@function
report_kernel:
    s_cmp_ge_u32 s2, 1
    s_cbranch_scc1 LR_end
    s_load_dwordx4 s[8:11], s[0:1], 32
    v_lshlrev_b32 v1, 2, v0
    v_add_u32 v3, 0x8000000, v1
    s_waitcnt lgkmcnt(0)
    global_load_dword v2, v3, s[10:11]
    s_waitcnt vmcnt(0)
    global_store_dword v1, v2, s[8:9]
LR_end:
    s_endpgm
.section .rodata,"a"
.p2align 6
.amdhsa_kernel report_kernel
  .amdhsa_next_free_vgpr 8
  .amdhsa_next_free_sgpr 64
  .amdhsa_accum_offset 8
  .amdhsa_group_segment_fixed_size 0
  .amdhsa_kernarg_size 48
  .amdhsa_user_sgpr_count 2
  .amdhsa_user_sgpr_kernarg_segment_ptr 1
  .amdhsa_system_sgpr_workgroup_id_x 1
.end_amdhsa_kernel
"""
open(sys.argv[2], 'w').write(real + probe)
```

```python
import sys, struct
OUT = sys.argv[1]
ROUNDS = int(sys.argv[2]) if len(sys.argv) > 2 else 14
WIN = int(sys.argv[3]) if len(sys.argv) > 3 else 3
NWG, NW, NLOAD, GRP = 256, 12, 24, 4
XBYTES = 56623104
RECOFF = 0x100000
SPIN = 3000000
L = []
def e(s=''): L.append(s)
def f2u(x): return struct.unpack('<I', struct.pack('<f', x))[0]
PSTR = 64*NW*4
GOFF = 3*PSTR
LDS = GOFF + 768

e(f"""; Kernarg layout for this problem (48 bytes, ptrs only, base s[0:1]):
; @launch grid=({NWG},1,1) block=({64*(NW+1)},1,1) lds={LDS}
;
;
.amdgcn_target "amdgcn-amd-amdhsa--gfx950"
.text
.globl standalone__channel_attn_se__vision_kernel
.p2align 8
.type standalone__channel_attn_se__vision_kernel,@function
standalone__channel_attn_se__vision_kernel:""")

ACC, T, D = 4, 10, 16
def dreg(k): return D + 4*k
OFF = [(k//GRP)*768*GRP*NW*NWG + (k % GRP)*768 for k in range(NLOAD)]
def plan(sreg):
    cur = 0; out = []
    for k in range(NLOAD):
        if OFF[k] - cur > 4095:
            out.append((f"    s_add_u32 s{sreg}, s{sreg}, {OFF[k]-cur}", 0)); cur = OFF[k]
        else:
            out.append((None, OFF[k]-cur))
    return out
e(f"""    s_load_dwordx2 s[16:17], s[0:1], 0
    v_readfirstlane_b32 s36, v0             ; wave*64
    v_and_b32 v0, 63, v0                    ; lane
    s_mul_i32 s39, s2, {768*GRP*NW}
    s_mov_b32 s18, {XBYTES}
    s_mov_b32 s19, 0x20000
    v_mul_u32_u24 v1, 12, v0
    s_mul_i32 s38, s36, {768*GRP//64}
    s_add_u32 s39, s39, s38
    s_cmpk_ge_u32 s2, {NWG}
    s_cbranch_scc1 L_end
    s_cmpk_eq_u32 s36, {64*NW}
    s_cbranch_scc1 L_sync
    s_waitcnt lgkmcnt(0)""")
PL = plan(39)
def issue(k):
    pre, imm = PL[k]
    if pre: e(pre)
    e(f"    buffer_load_dwordx3 v[{dreg(k)}:{dreg(k)+2}], v1, s[16:19], s39 offen offset:{imm} nt")
assert all(PL[k][0] is None for k in range(WIN))
for k in range(WIN): issue(k)
e(f"""    s_load_dwordx2 s[20:21], s[0:1], 24
    s_mov_b32 s41, s39
    s_mov_b32 s22, {XBYTES}
    s_mov_b32 s23, 0x20000
    s_mov_b32 s42, 0xffff0000
    v_and_b32 v3, 31, v0
    v_mul_u32_u24 v3, 24, v3
    s_lshr_b32 s38, s36, 4                  ; wave*4
    v_mul_u32_u24 v2, {4*NW}, v0
    v_add_u32 v2, s38, v2
    s_getreg_b32 s40, hwreg(HW_REG_XCC_ID)
    s_bitcmp1_b32 s40, 0
    s_cselect_b64 vcc, -1, 0
    ; ---- phase 1: stream x into VGPRs ({WIN} loads in flight per wave), accumulate 6 channels in fp32""")
for k in range(NLOAD):
    e(f"    s_waitcnt vmcnt({min(WIN-1, NLOAD-1-k)})")
    if k + WIN < NLOAD: issue(k+WIN)
    for i in range(3):
        d = dreg(k)+i
        t = (ACC if k == 0 else T) + 2*i
        e(f"    v_lshlrev_b32 v{t}, 16, v{d}")
        e(f"    v_and_b32 v{t+1}, s42, v{d}")
    if k:
        for i in range(3):
            t = T + 2*i
            e(f"    v_pk_add_f32 v[{ACC+2*i}:{ACC+2*i+1}], v[{ACC+2*i}:{ACC+2*i+1}], v[{t}:{t+1}]")
e("    s_nop 0")
for j in range(3):
    e(f"    v_permlane32_swap_b32 v{ACC+j}, v{ACC+j+3}")
for j in range(3):
    e(f"    v_add_f32 v{ACC+j}, v{ACC+j}, v{ACC+j+3}")
    e(f"    ds_write_b32 v2, v{ACC+j} offset:{j*PSTR}")
e(f"""    s_waitcnt lgkmcnt(0)
    s_barrier
    s_barrier
L_store:
    ds_read_b64 v[{ACC}:{ACC+1}], v3 offset:{GOFF}
    ds_read_b64 v[{ACC+2}:{ACC+3}], v3 offset:{GOFF+8}
    ds_read_b64 v[{ACC+4}:{ACC+5}], v3 offset:{GOFF+16}""")
for k, (pre, imm) in enumerate(plan(41)):
    for i in range(3):
        d = dreg(k)+i; t = T + 2*i
        e(f"    v_lshlrev_b32 v{t}, 16, v{d}")
        e(f"    v_and_b32 v{t+1}, s42, v{d}")
    if k == 0: e("    s_waitcnt lgkmcnt(0)")
    for i in range(3):
        t = T + 2*i
        e(f"    v_pk_mul_f32 v[{t}:{t+1}], v[{t}:{t+1}], v[{ACC+2*i}:{ACC+2*i+1}]")
    for i in range(3):
        d = dreg(k)+i; t = T + 2*i
        e(f"    v_cvt_pk_bf16_f32 v{d}, v{t}, v{t+1}")
    if pre: e(pre)
    if k >= 1 and (k*ROUNDS)//NLOAD != ((k-1)*ROUNDS)//NLOAD:
        e(f"    s_cbranch_vccnz L_th{k}")
        e("    s_waitcnt vmcnt(0)")
        e(f"L_th{k}:")
    e(f"    s_cbranch_execz L_sk{k}")
    e(f"    buffer_store_dwordx3 v[{dreg(k)}:{dreg(k)+2}], v1, s[20:23], s41 offen offset:{imm} sc1")
    e(f"L_sk{k}:")
e("    s_cbranch_execz L_arm2")
e("    s_endpgm")

WUP, WUS, WD, SR = 16, 40, 52, 88
PR = [52+4*i for i in range(16)]
def so(i): return ['0', 's50', 's51', 's52'][i//4]
e(f"""    ; ================= sync wave =================
L_sync:
    s_load_dwordx4 s[4:7], s[0:1], 0        ; x, w_down
    s_load_dwordx4 s[8:11], s[0:1], 16
    s_load_dwordx4 s[12:15], s[0:1], 32
    s_setprio 3
    v_mov_b32 v8, 0
    v_mov_b32 v9, 0
    v_mov_b32 v10, 0
    v_mov_b32 v11, 0
    v_lshlrev_b32 v1, 4, v0                 ; lane*16
    v_lshlrev_b32 v4, 2, v0                 ; lane*4
    s_mov_b32 s22, {XBYTES}
    s_mov_b32 s23, 0x20000
    s_mov_b32 s26, 4608
    s_mov_b32 s27, 0x20000
    s_mov_b32 s30, 4608
    s_mov_b32 s31, 0x20000
    s_mov_b32 s34, {64*NWG}
    s_mov_b32 s35, 0x20000
    s_mov_b32 s46, 256
    s_mov_b32 s47, 0x20000
    s_movk_i32 s50, 0x1000
    s_movk_i32 s51, 0x2000
    s_movk_i32 s52, 0x3000
    s_movk_i32 s53, 0x900
    s_mov_b32 s41, 0
    s_mov_b32 s42, 0xffff0000
    s_lshl_b32 s43, s2, 6
    s_mov_b32 s54, {SPIN}
    s_mov_b32 s56, 0x00010001
    s_mov_b32 s57, 0x00010001
    s_mov_b32 s58, 0x36e38e39               ; 1/147456
    s_mov_b32 s59, 0xbfb8aa3b               ; -log2(e)
    s_waitcnt lgkmcnt(0)
    s_add_u32 s32, s14, {RECOFF}
    s_addc_u32 s33, s15, 0
    s_and_b32 s33, s33, 0xffff
    s_mov_b32 s44, s12
    s_and_b32 s45, s13, 0xffff
    s_mov_b32 s24, s6
    s_and_b32 s25, s7, 0xffff
    s_mov_b32 s28, s8
    s_and_b32 s29, s9, 0xffff
    s_mov_b32 s20, s10
    s_and_b32 s21, s11, 0xffff
    s_cmp_lg_u32 s2, 0
    s_cbranch_scc1 L_noclear
    ; workgroup 0: clear the records, then raise the flag""")
for i in range(16):
    e(f"    buffer_store_dwordx4 v[8:11], v1, s[32:35], {so(i)} offen offset:{(i%4)*1024} sc1")
e(f"""    v_mov_b32 v5, 1
    s_waitcnt vmcnt(0)
    s_mov_b64 exec, 1
    buffer_store_dword v5, v8, s[44:47], 0 offen sc1
    s_mov_b64 exec, -1
L_noclear:
    v_and_b32 v5, 31, v0
    v_lshrrev_b32 v6, 5, v0
    v_lshl_add_u32 v6, v5, 1, v6
    v_mul_u32_u24 v6, 72, v6
    v_lshlrev_b32 v2, 1, v0                 ; lane*2
    v_mul_u32_u24 v3, {4*NW}, v0
    s_setprio 0
    s_mov_b64 exec, 0
    s_branch L_crit
L_arm:
    s_mov_b64 exec, -1
    s_setprio 3""")
for i in range(4):
    e(f"    buffer_load_dwordx4 v[{SR+4*i}:{SR+4*i+3}], v6, s[24:27], 0 offen offset:{16*i}")
e(f"    buffer_load_dwordx2 v[{SR+16}:{SR+17}], v6, s[24:27], 0 offen offset:64")
for i in range(12):
    e(f"    v_mov_b32 v{WUS+i}, 0")
RU = SR+20
def wu(op, reg, addr, off):
    if off < 4096: e(f"    {op} v{reg}, {addr}, s[28:31], 0 offen offset:{off}")
    else: e(f"    {op} v{reg}, {addr}, s[28:31], s53 offen offset:{off-2304}")
for r in range(12): wu("buffer_load_dword", RU+r, "v4", r*384)
for r in range(12): wu("buffer_load_short_d16_hi", WUS+r, "v2", r*384+256)
e("""    buffer_load_dword v5, v8, s[44:47], 0 offen sc1
    s_setprio 0
    s_mov_b64 vcc, -1
    s_mov_b64 exec, 0
    s_branch L_store
L_arm2:
    s_mov_b64 exec, -1
    s_setprio 3
    s_branch L_flagchk
L_flag:
    buffer_load_dword v5, v8, s[44:47], 0 offen sc1
L_flagchk:
    s_sub_u32 s54, s54, 1
    s_cbranch_scc1 L_flagok
    s_waitcnt vmcnt(0)
    v_cmp_ne_u32 vcc, 0, v5
    s_cbranch_vccnz L_flagok
    s_sleep 8
    s_branch L_flag
L_flagok:
    s_waitcnt vmcnt(0)
    ; weights to fp32; 1/(H*W) folded into w_down, -log2(e) into w_up""")
for i in range(18):
    e(f"    v_lshlrev_b32 v{WD+2*i}, 16, v{SR+i}")
    e(f"    v_and_b32 v{WD+2*i+1}, s42, v{SR+i}")
for r in range(12):
    e(f"    v_lshlrev_b32 v{WUP+2*r}, 16, v{RU+r}")
    e(f"    v_and_b32 v{WUP+2*r+1}, s42, v{RU+r}")
for i in range(36): e(f"    v_mul_f32 v{WD+i}, s58, v{WD+i}")
for i in range(36): e(f"    v_mul_f32 v{WUP+i}, s59, v{WUP+i}")
e(f"""    v_mov_b32 v11, 1.0
    v_lshlrev_b32 v2, 3, v0                 ; lane*8
    s_mov_b32 s54, {SPIN}
L_crit:
    s_cbranch_execz L_c1
    s_barrier                               ; B1
L_c1:
    ; sum the 12 waves' partials of this lane's 3 channels, project on w_down""")
for j in range(3):
    for q in range(3):
        b = SR+12*j+4*q
        e(f"    ds_read_b128 v[{b}:{b+3}], v3 offset:{j*PSTR+16*q}")
def pk(d, x, y): e(f"    v_pk_add_f32 v[{d}:{d+1}], v[{x}:{x+1}], v[{y}:{y+1}]")
for j in range(3):
    b = SR+12*j; bp = b-12
    e(f"    s_waitcnt lgkmcnt({6-3*j})")
    pk(b, b, b+2); pk(b+4, b+4, b+6); pk(b+8, b+8, b+10)
    if j: pk(bp, bp, bp+8)
    pk(b, b, b+4)
    if j: e(f"    v_add_f32 v{12+2*(j-1)}, v{bp}, v{bp+1}")
b = SR+24
HP = SR+2
e(f"    v_pk_mul_f32 v[{HP}:{HP+1}], v[12:13], v[{WD}:{WD+1}] op_sel_hi:[0,1]")
pk(b, b, b+8)
for i in range(1, 6):
    e(f"    v_pk_mul_f32 v[{HP+2*i}:{HP+2*i+1}], v[12:13], v[{WD+2*i}:{WD+2*i+1}] op_sel_hi:[0,1]")
e(f"    v_add_f32 v12, v{b}, v{b+1}")
for j, src in ((1, 14), (2, 12)):
    for i in range(6):
        w = WD+12*j+2*i
        e(f"    v_pk_fma_f32 v[{HP+2*i}:{HP+2*i+1}], v[{src}:{src+1}], v[{w}:{w+1}], v[{HP+2*i}:{HP+2*i+1}] op_sel_hi:[0,1,1]")
for r in range(6): e(f"    v_permlane32_swap_b32 v{HP+r}, v{HP+r+6}")
for r in range(6): e(f"    v_add_f32 v{HP+r}, v{HP+r}, v{HP+r+6}")
for r in range(3): e(f"    v_permlane16_swap_b32 v{HP+r}, v{HP+r+3}")
for r in range(3): e(f"    v_add_f32 v{8+r}, v{HP+r}, v{HP+r+3}")
for ctl in ("row_ror:8", "row_ror:4", "row_ror:2", "row_ror:1"):
    for r in range(3):
        e(f"    v_add_f32_dpp v{8+r}, v{8+r}, v{8+r} {ctl} row_mask:0xf bank_mask:0xf")
e("""    s_cbranch_execz L_p0
    s_mov_b64 exec, s[56:57]
    buffer_store_dwordx4 v[8:11], v0, s[32:35], s43 offen sc1
    s_mov_b64 exec, -1
    s_waitcnt vmcnt(0)
L_poll:
    s_sub_u32 s54, s54, 1
    s_cbranch_scc1 L_gate""")
for i in range(16):
    e(f"    buffer_load_dwordx4 v[{PR[i]}:{PR[i]+3}], v1, s[32:35], {so(i)} offen offset:{(i%4)*1024} sc1")
    if i in (2, 8):
        e(f"L_p{0 if i == 2 else 1}:")
        e(f"    s_cbranch_execz L_p{1 if i == 2 else 2}")
e("L_p2:")
for i in range(1, 16):
    e(f"    s_waitcnt vmcnt({15-i})")
    a0, a1 = (PR[0], PR[0]+2) if i == 1 else (12, 14)
    pk(12, a0, PR[i]); pk(14, a1, PR[i]+2)
e(f"""    v_cmp_neq_f32 vcc, {f2u(16.0):#x}, v15
    s_cbranch_vccnz L_poll
L_gate:""")
for ctl in ("row_ror:4", "row_ror:8"):
    for j in range(3):
        e(f"    v_add_f32_dpp v{12+j}, v{12+j}, v{12+j} {ctl} row_mask:0xf bank_mask:0xf")
e("""    v_mov_b32 v15, v14
    s_nop 0
    v_permlane32_swap_b32 v12, v13
    v_permlane32_swap_b32 v14, v15
    s_nop 0
    v_add_f32 v12, v12, v13
    v_add_f32 v14, v14, v15
    s_nop 1
    v_permlane16_swap_b32 v12, v14
    s_nop 0
    v_add_f32 v8, v12, v14                  ; z_r, r = 3*(lane&3) + {0,2,1,2}[lane>>4]
    v_mul_f32 v9, s59, v8
    v_exp_f32 v9, v9
    s_nop 0
    v_add_f32 v9, 1.0, v9
    v_rcp_f32 v9, v9
    s_nop 0
    v_mul_f32 v8, v8, v9                    ; h = silu(z)
    s_nop 0""")
for r in range(12):
    e(f"    v_readlane_b32 s{60+r}, v8, {16*{0:0,1:2,2:1}[r % 3] + r//3}")
for r in range(12):
    sp = 60 + (r & ~1)
    w = WUP+2*r
    if r == 0:
        e(f"    v_pk_mul_f32 v[12:13], s[{sp}:{sp+1}], v[{w}:{w+1}] op_sel_hi:[0,1]")
        e(f"    v_pk_mul_f32 v[14:15], s[{sp}:{sp+1}], v[{WUS}:{WUS+1}]")
    elif r % 2 == 0:
        e(f"    v_pk_fma_f32 v[12:13], s[{sp}:{sp+1}], v[{w}:{w+1}], v[12:13] op_sel_hi:[0,1,1]")
        e(f"    v_pk_fma_f32 v[14:15], s[{sp}:{sp+1}], v[{WUS+r}:{WUS+r+1}], v[14:15]")
    else:
        e(f"    v_pk_fma_f32 v[12:13], s[{sp}:{sp+1}], v[{w}:{w+1}], v[12:13] op_sel:[1,0,0] op_sel_hi:[1,1,1]")
e("    v_add_f32 v14, v14, v15")
for j in range(3): e(f"    v_exp_f32 v{12+j}, v{12+j}")
for j in range(3): e(f"    v_add_f32 v{12+j}, 1.0, v{12+j}")
for j in range(3): e(f"    v_rcp_f32 v{12+j}, v{12+j}")
e(f"""    s_nop 0
    ds_write_b64 v2, v[12:13] offset:{GOFF}
    ds_write_b32 v4, v14 offset:{GOFF+512}
    s_waitcnt lgkmcnt(0)
    s_cbranch_execz L_arm
    s_barrier                               ; B2
L_end:
    s_endpgm
.section .rodata,"a"
.p2align 6
.amdhsa_kernel standalone__channel_attn_se__vision_kernel
  .amdhsa_next_free_vgpr 124
  .amdhsa_next_free_sgpr 80
  .amdhsa_accum_offset 124
  .amdhsa_group_segment_fixed_size 0
  .amdhsa_kernarg_size 48
  .amdhsa_user_sgpr_count 2
  .amdhsa_user_sgpr_kernarg_segment_ptr 1
  .amdhsa_system_sgpr_workgroup_id_x 1
  .amdhsa_float_denorm_mode_32 3
.end_amdhsa_kernel""")
open(OUT, 'w').write('\n'.join(L) + '\n')
```

```python
import sys, struct
OUT = sys.argv[1]
OPT = dict(a.split('=') for a in sys.argv[2:])
PRE = int(OPT.get('pre', 4)); LATE = int(OPT.get('late', 1))
NWG, NW, NLOAD = 256, 8, 36
WIN = int(OPT.get('win', 5))
ROUNDS = 13
RACES = 3
DS = [2, 7]
ST = [k for k in range(9) if k not in DS]
ND, NS = len(DS), len(ST)
NSL = 4*NS
STRIPE = 6291456
XBYTES = 56623104
RECOFF = 0x100000
SPIN = 3000000
PSTR = 64*NW*4
GOFF = 3*PSTR
LDS = GOFF + 768
L = []
def e(s=''): L.append(s)
def f2u(x): return struct.unpack('<I', struct.pack('<f', x))[0]

e(f"""; Kernarg layout for this problem (48 bytes, ptrs only, base s[0:1]):
; @launch grid=({NWG},1,1) block=({64*(NW+2)},1,1) lds={LDS}
;
;
;
.amdgcn_target "amdgcn-amd-amdhsa--gfx950"
.text
.globl standalone__channel_attn_se__vision_kernel
.p2align 8
.type standalone__channel_attn_se__vision_kernel,@function
standalone__channel_attn_se__vision_kernel:""")

ACC, T, D = 4, 10, 16
PEEK = 160
DYN = 60
NV = 8*RACES
def dreg(k): return D + 4*k
e(f"""    s_load_dwordx2 s[16:17], s[0:1], 0
    v_readfirstlane_b32 s36, v0             ; wave*64
    v_and_b32 v0, 63, v0                    ; lane
    s_mul_i32 s39, s2, 24576
    s_mov_b32 s18, {XBYTES}
    s_mov_b32 s19, 0x20000
    v_mul_u32_u24 v1, 12, v0
    s_and_b32 s37, s2, 1
    s_mulk_i32 s37, -224
    s_add_u32 s37, s37, s36
    s_mulk_i32 s37, 96
    s_add_u32 s39, s39, s37
    s_cmpk_ge_u32 s2, {NWG}
    s_cbranch_scc1 L_end
    s_cmpk_ge_u32 s36, {64*NW}
    s_cbranch_scc1 L_aux
    s_waitcnt lgkmcnt(0)""")
OPS = []
def after(op): return len(OPS) - 1 - OPS.index(op)
def addr(k, sreg):
    g, j = divmod(k, 4)
    if k < NSL:
        if j == 0 and g: e(f"    s_add_u32 s{sreg}, s{sreg}, {(ST[g]-ST[g-1])*STRIPE}")
        return f"s{sreg} offen offset:{768*j}"
    return f"s{DYN+g-NS} offen offset:{768*j}"
def decide():
    e(f"""    ; ---- split the shared stripes with the pair mate
    s_waitcnt vmcnt({after('peek')})
L_dchk:
    v_readfirstlane_b32 s47, v{PEEK+1}
    v_readfirstlane_b32 s48, v{PEEK}
    s_cmp_ge_u32 s47, {32<<16:#x}
    s_cbranch_scc0 L_dwait
L_dok:
    s_lshr_b32 s50, s47, 8
    s_add_u32 s50, s50, s2
    s_lshr_b32 s50, s50, 2
    s_add_u32 s48, s48, s59
    s_lshr_b32 s51, s48, 6
    s_xor_b32 s51, s51, s48
    s_xor_b32 s51, s51, s45
    s_and_b32 s51, s51, s46
    s_bitcmp1_b32 s51, 17
    s_cselect_b32 s47, 0x115, 0
    s_bitcmp1_b32 s51, 5
    s_cselect_b32 s47, s47, 0""")
    for t in range(ND):
        e(f"""    s_lshr_b32 s51, s48, s{52+t}
    s_xor_b32 s51, s51, s50
    s_lshr_b32 s58, s47, s{55+t}
    s_xor_b32 s51, s51, s58
    s_xor_b32 s51, s51, s{76+t}
    s_bitcmp1_b32 s51, 0
    s_cselect_b32 s58, 0x6000, 0
    s_add_u32 s{DYN+t}, s{DYN+t}, s58""")
    e("""    s_lshr_b32 s51, s47, 8
    s_andn2_b32 s51, s51, s40
    s_bitcmp1_b32 s51, 0
    s_cselect_b64 vcc, 0, -1""")
def issue(k):
    if k == NSL: decide()
    ad = addr(k, 39)
    e(f"    buffer_load_dwordx3 v[{dreg(k)}:{dreg(k)+2}], v1, s[16:19], {ad} nt")
    OPS.append(k)
    if k == NSL - WIN:
        e(f"    buffer_load_dwordx2 v[{PEEK}:{PEEK+1}], off, s[72:75], 0 offset:128 sc1")
        OPS.append('peek')
for k in range(PRE): issue(k)
packed = 0
for n, d in enumerate(DS + DS[:-1]): packed |= d << (4*n)
e(f"""    s_load_dwordx2 s[20:21], s[0:1], 24
    s_load_dwordx2 s[72:73], s[0:1], 32
    s_mov_b32 s41, s39
    s_mov_b32 s22, {XBYTES}
    s_mov_b32 s23, 0x20000
    s_movk_i32 s74, 0x100
    s_mov_b32 s75, 0x20000""")
if not LATE:
    for k in range(PRE, WIN): issue(k)
e(f"""    s_mov_b32 s42, 0xffff0000
    v_and_b32 v3, 31, v0
    v_mul_u32_u24 v3, 24, v3
    s_lshr_b32 s38, s36, 4                  ; wave*4
    v_lshl_add_u32 v2, v0, 5, s38
    s_getreg_b32 s40, hwreg(HW_REG_XCC_ID)
    s_lshr_b32 s43, s2, 3                   ; row
    s_and_b32 s44, s2, 3
    s_lshl2_add_u32 s44, s43, s44           ; pair
    s_mul_i32 s44, s44, 49152
    s_mul_i32 s38, s36, 48
    s_add_u32 s44, s44, s38
    s_and_b32 s45, s43, 1
    s_lshl_b32 s45, s45, 2
    s_lshr_b32 s45, {packed:#x}, s45
    s_lshr_b32 s43, s43, 1
    s_waitcnt lgkmcnt(0)""")
for t in range(ND):
    e(f"""    s_bfe_u32 s51, s45, {0x40000+4*t:#x}
    s_mul_i32 s{DYN+t}, s51, {STRIPE}
    s_add_u32 s{DYN+t}, s{DYN+t}, s44
    s_add_u32 s58, s51, s43
    s_and_b32 s58, s58, 3
    s_cmp_ge_u32 s51, 6
    s_cselect_b32 s{52+t}, 23, 11
    s_cselect_b32 s{55+t}, 4, 0
    s_add_u32 s{55+t}, s{55+t}, s58
    s_add_u32 s58, s{DYN+t}, s20
    s_add_u32 s58, s58, 1536
    s_lshr_b32 s{76+t}, s58, 8
    s_xor_b32 s{76+t}, s{76+t}, s58
    s_lshr_b32 s{76+t}, s{76+t}, 13""")
e(f"""    s_mov_b32 s49, {SPIN}
    s_add_u32 s45, s16, 0x100800
    s_add_u32 s46, s20, 0x100800
    s_xor_b32 s45, s45, s46
    s_lshr_b32 s46, s45, 8
    s_xor_b32 s45, s45, s46
    s_bitcmp1_b32 s45, 13
    s_cselect_b32 s45, -1, 0
    s_sub_u32 s46, s16, s20
    s_add_u32 s46, s46, 0x800
    s_bitcmp1_b32 s46, 12
    s_cselect_b32 s46, 0, -1
    s_cselect_b32 s59, {32-(NV+1)}, {32-(NV//2+1)}
    s_mul_i32 s59, s59, 0x41041
    ; ---- phase 1: stream x into VGPRs ({WIN} loads in flight per wave), accumulate 6 channels in fp32""")
if LATE:
    for k in range(PRE, WIN): issue(k)
for k in range(NLOAD):
    e(f"    s_waitcnt vmcnt({after(k)})")
    if k + WIN < NLOAD: issue(k+WIN)
    for i in range(3):
        d = dreg(k)+i
        t = (ACC if k == 0 else T) + 2*i
        e(f"    v_lshlrev_b32 v{t}, 16, v{d}")
        e(f"    v_and_b32 v{t+1}, s42, v{d}")
    if k:
        for i in range(3):
            t = T + 2*i
            e(f"    v_pk_add_f32 v[{ACC+2*i}:{ACC+2*i+1}], v[{ACC+2*i}:{ACC+2*i+1}], v[{t}:{t+1}]")
e("    s_nop 0")
for j in range(3):
    e(f"    v_permlane32_swap_b32 v{ACC+j}, v{ACC+j+3}")
for j in range(3):
    e(f"    v_add_f32 v{ACC+j}, v{ACC+j}, v{ACC+j+3}")
    e(f"    ds_write_b32 v2, v{ACC+j} offset:{j*PSTR}")
e(f"""    s_waitcnt lgkmcnt(0)
    s_barrier
    s_barrier
L_store:
    ds_read_b64 v[{ACC}:{ACC+1}], v3 offset:{GOFF}
    ds_read_b64 v[{ACC+2}:{ACC+3}], v3 offset:{GOFF+8}
    ds_read_b64 v[{ACC+4}:{ACC+5}], v3 offset:{GOFF+16}""")
stat = list(range(NSL)); dyn = list(range(NSL, NLOAD)); order = []
while stat or dyn:
    if dyn and (not stat or (len(order)+1)*ND >= (len([q for q in order if q >= NSL])+1)*9): order.append(dyn.pop(0))
    else: order.append(stat.pop(0))
for n, k in enumerate(order):
    for i in range(3):
        d = dreg(k)+i; t = T + 2*i
        e(f"    v_lshlrev_b32 v{t}, 16, v{d}")
        e(f"    v_and_b32 v{t+1}, s42, v{d}")
    if n == 0: e("    s_waitcnt lgkmcnt(0)")
    for i in range(3):
        t = T + 2*i
        e(f"    v_pk_mul_f32 v[{t}:{t+1}], v[{t}:{t+1}], v[{ACC+2*i}:{ACC+2*i+1}]")
    for i in range(3):
        d = dreg(k)+i; t = T + 2*i
        e(f"    v_cvt_pk_bf16_f32 v{d}, v{t}, v{t+1}")
    ad = addr(k, 41)
    if n >= 1 and (n*ROUNDS)//NLOAD != ((n-1)*ROUNDS)//NLOAD:
        e(f"    s_cbranch_vccnz L_th{n}")
        e("    s_waitcnt vmcnt(0)")
        e(f"L_th{n}:")
    e(f"    s_cbranch_execz L_sk{n}")
    e(f"    buffer_store_dwordx3 v[{dreg(k)}:{dreg(k)+2}], v1, s[20:23], {ad} sc1")
    e(f"L_sk{n}:")
e(f"""    s_endpgm
L_dwait:
    s_sub_u32 s49, s49, 1
    s_cbranch_scc1 L_dok
    buffer_load_dwordx2 v[{PEEK}:{PEEK+1}], off, s[72:75], 0 offset:128 sc1
    s_waitcnt vmcnt(0)
    s_branch L_dchk""")

e(f"""    ; ================= helper wave =================
L_aux:
    s_cmpk_eq_u32 s36, {64*NW}
    s_cbranch_scc1 L_sync
    s_load_dwordx2 s[20:21], s[0:1], 24     ; out
    s_mov_b32 s22, s18
    s_mov_b32 s23, 0x20000
    s_cmp_ge_u32 s2, 56
    s_cbranch_scc1 L_warm
    s_load_dwordx4 s[12:15], s[0:1], 32
    s_setprio 3
    s_mov_b32 s46, 256
    s_mov_b32 s47, 0x20000
    s_cmp_lt_u32 s2, 8
    s_cbranch_scc1 L_clear
    s_lshr_b32 s50, s2, 3
    s_sub_u32 s50, s50, 1                   ; t
    s_and_b32 s51, s2, 15
    s_and_b32 s52, s2, 1
    s_lshl1_add_u32 s52, s52, 6
    s_bitcmp1_b32 s50, 1
    s_cselect_b32 s52, 22, s52
    s_bitcmp1_b32 s50, 2
    s_cselect_b32 s52, 0, s52
    s_lshl_b32 s52, s52, 21
    s_lshl_b32 s53, s51, 14
    s_add_u32 s52, s52, s53
    s_add_u32 s52, s52, {RECOFF+0x10000:#x}
    s_lshl_b32 s53, s51, 11
    s_and_b32 s53, s53, 0x1000
    s_lshl_b32 s51, s51, 8
    s_add_u32 s53, s53, s51
    s_getreg_b32 s40, hwreg(HW_REG_XCC_ID)
    s_and_b32 s40, s40, 7
    s_mov_b32 s54, 0
    s_waitcnt lgkmcnt(0)
    s_sub_u32 s55, s16, s20
    s_add_u32 s55, s55, 0x800
    s_bfe_u32 s55, s55, 0x1000c
    s_or_b32 s50, s50, s55
    s_bitcmp1_b32 s50, 0
    s_cselect_b32 s62, s20, s16
    s_cselect_b32 s63, s21, s17
    s_bitcmp1_b32 s50, 2
    s_cselect_b32 s62, s14, s62
    s_cselect_b32 s63, s15, s63
    s_add_u32 s62, s62, s52
    s_addc_u32 s63, s63, 0
    s_and_b32 s62, s62, 0xffffc000
    s_or_b32 s62, s62, s53
    s_lshr_b32 s56, s62, 19
    s_xor_b32 s56, s56, s40
    ; scalar loads answer in order and count 1 (dword) / 2 (dwordx2): a count of 2 = the first one was quicker""")
for r in range(RACES):
    f, g2 = (0, 8192) if r % 2 == 0 else (8192, 0)
    e(f"""    s_load_dword s64, s[62:63], {f} glc
    s_load_dwordx2 s[66:67], s[62:63], {g2} glc
    s_waitcnt lgkmcnt(2)
    s_nop 3
    s_getreg_b32 s65, hwreg(HW_REG_IB_STS, 8, 4)
    s_waitcnt lgkmcnt(0)
    s_cmp_{'eq' if r % 2 == 0 else 'lg'}_u32 s65, 2
    s_addc_u32 s54, s54, 0""")
e(f"""    s_mov_b32 s44, s12
    s_and_b32 s45, s13, 0xffff
    s_sub_u32 s55, {RACES}, s54
    s_bitcmp1_b32 s56, 2
    s_cselect_b32 s54, s54, s55
    s_mov_b64 exec, 1
    s_bitcmp1_b32 s50, 2
    s_cbranch_scc1 L_wsvote
    s_mul_i32 s50, s50, 6
    s_lshl_b32 s54, s54, s50
    s_lshl_b32 s40, s40, 8
    s_cmp_eq_u32 s2, 8
    s_cselect_b32 s55, s40, 0
    s_add_u32 s55, s55, 0x10000
    v_mov_b32 v4, s54
    v_mov_b32 v5, s55
    buffer_atomic_add_x2 v[4:5], off, s[44:47], 0 offset:128
L_warm:
    s_setprio 0
    s_mov_b64 vcc, -1
    s_mov_b64 exec, 0
    s_branch L_store
L_wsvote:
    s_add_u32 s54, s54, 0x8000
    v_mov_b32 v4, s54
    buffer_atomic_add v4, off, s[44:47], 0 offset:64
    s_branch L_warm
L_clear:
    v_mov_b32 v8, 0
    v_mov_b32 v9, 0
    v_mov_b32 v10, 0
    v_mov_b32 v11, 0
    v_lshlrev_b32 v1, 4, v0
    s_lshl_b32 s53, s2, 12
    s_mov_b32 s34, 32768
    s_mov_b32 s35, 0x20000
    s_waitcnt lgkmcnt(0)
    s_add_u32 s32, s14, {RECOFF}
    s_addc_u32 s33, s15, 0
    s_and_b32 s32, s32, 0xffffc000
    s_and_b32 s33, s33, 0xffff
    s_mov_b32 s44, s12
    s_and_b32 s45, s13, 0xffff""")
for i in range(4):
    e(f"    buffer_store_dwordx4 v[8:11], v1, s[32:35], s53 offen offset:{i*1024} sc1")
e("""    v_mov_b32 v5, 0x10000
    s_waitcnt vmcnt(0)
    s_mov_b64 exec, 1
    buffer_atomic_add v5, off, s[44:47], 0
    s_branch L_warm""")

WUP, WUS, WD, SR = 16, 40, 52, 88
PR = [52+4*i for i in range(16)]
def so(i): return ['0', 's50', 's51', 's52'][i//4]
e(f"""    ; ================= sync wave =================
L_sync:
    s_load_dwordx2 s[24:25], s[0:1], 8
    s_load_dwordx2 s[28:29], s[0:1], 16
    s_load_dwordx4 s[12:15], s[0:1], 32
    v_lshlrev_b32 v1, 4, v0                 ; lane*16
    v_lshlrev_b32 v4, 2, v0                 ; lane*4
    v_and_b32 v9, 1, v0
    v_lshlrev_b32 v7, 13, v9
    v_and_b32 v6, 48, v0
    v_add_u32 v7, v7, v6
    v_lshlrev_b32 v9, 6, v9
    v_and_b32 v5, 31, v0
    v_lshrrev_b32 v6, 5, v0
    v_lshl_add_u32 v6, v5, 1, v6
    v_mul_u32_u24 v6, 72, v6
    v_lshlrev_b32 v2, 1, v0                 ; lane*2
    v_lshlrev_b32 v3, 5, v0
    s_mov_b32 s26, 4608
    s_mov_b32 s27, 0x20000
    s_mov_b32 s30, 4608
    s_mov_b32 s31, 0x20000
    s_mov_b32 s34, 32768
    s_mov_b32 s35, 0x20000
    s_mov_b32 s46, 256
    s_mov_b32 s47, 0x20000
    s_movk_i32 s50, 0x1000
    s_movk_i32 s51, 0x4000
    s_movk_i32 s52, 0x5000
    s_movk_i32 s53, 0x900
    s_mov_b32 s42, 0xffff0000
    s_and_b32 s43, s2, 127
    s_lshl_b32 s43, s43, 6
    s_lshr_b32 s55, s2, 7
    s_lshl_b32 s55, s55, 14
    s_add_u32 s43, s43, s55
    s_mov_b32 s54, {SPIN}
    s_mov_b32 s56, 0x00030003
    s_mov_b32 s57, 0x00030003
    s_mov_b32 s58, 0x36e38e39               ; 1/147456
    s_mov_b32 s59, 0xbfb8aa3b               ; -log2(e)
    s_waitcnt lgkmcnt(0)
    s_add_u32 s32, s14, {RECOFF}
    s_addc_u32 s33, s15, 0
    s_and_b32 s32, s32, 0xffffc000
    s_and_b32 s33, s33, 0xffff
    s_mov_b32 s44, s12
    s_and_b32 s45, s13, 0xffff
    s_mov_b64 exec, 0
    s_branch L_crit
L_arm:
    s_mov_b64 exec, -1
    s_setprio 3""")
for i in range(4):
    e(f"    buffer_load_dwordx4 v[{SR+4*i}:{SR+4*i+3}], v6, s[24:27], 0 offen offset:{16*i}")
e(f"    buffer_load_dwordx2 v[{SR+16}:{SR+17}], v6, s[24:27], 0 offen offset:64")
for i in range(12):
    e(f"    v_mov_b32 v{WUS+i}, 0")
RU = SR+20
def wu(op, reg, ad, off):
    if off < 4096: e(f"    {op} v{reg}, {ad}, s[28:31], 0 offen offset:{off}")
    else: e(f"    {op} v{reg}, {ad}, s[28:31], s53 offen offset:{off-2304}")
for r in range(12): wu("buffer_load_dword", RU+r, "v4", r*384)
for r in range(12): wu("buffer_load_short_d16_hi", WUS+r, "v2", r*384+256)
e("""    s_waitcnt vmcnt(0)
    ; weights to fp32; 1/(H*W) folded into w_down, -log2(e) into w_up""")
for i in range(18):
    e(f"    v_lshlrev_b32 v{WD+2*i}, 16, v{SR+i}")
    e(f"    v_and_b32 v{WD+2*i+1}, s42, v{SR+i}")
for r in range(12):
    e(f"    v_lshlrev_b32 v{WUP+2*r}, 16, v{RU+r}")
    e(f"    v_and_b32 v{WUP+2*r+1}, s42, v{RU+r}")
for i in range(36): e(f"    v_mul_f32 v{WD+i}, s58, v{WD+i}")
for i in range(36): e(f"    v_mul_f32 v{WUP+i}, s59, v{WUP+i}")
e(f"""L_flag:
    buffer_load_dword v5, v9, s[44:47], 0 offen sc1
    s_sub_u32 s54, s54, 1
    s_cbranch_scc1 L_flagok
    s_waitcnt vmcnt(0)
    v_cmp_gt_u32 vcc, 0x80000, v5
    s_cbranch_vccz L_flagok
    s_sleep 8
    s_branch L_flag
L_flagok:
    s_waitcnt vmcnt(0)
    s_getreg_b32 s55, hwreg(HW_REG_XCC_ID)
    v_readlane_b32 s37, v5, 1
    s_lshr_b32 s55, s55, 2
    s_lshr_b32 s38, s32, 21
    s_xor_b32 s55, s55, s38
    s_add_u32 s37, s37, {64-(16*RACES//2+1)}
    s_lshr_b32 s37, s37, 6
    s_xor_b32 s55, s55, s37
    s_and_b32 s55, s55, 1
    s_lshl_b32 s55, s55, 13
    v_add_u32 v1, s55, v1
    v_mov_b32 v11, 1.0
    v_lshlrev_b32 v2, 3, v0                 ; lane*8
    s_mov_b32 s54, {SPIN}
L_crit:
    s_cbranch_execz L_c1
    s_barrier                               ; B1
L_c1:
    ; sum the 8 waves' partials of this lane's 3 channels, project on w_down""")
for j in range(3):
    for q in range(2):
        b = SR+8*j+4*q
        e(f"    ds_read_b128 v[{b}:{b+3}], v3 offset:{j*PSTR+16*q}")
def pk(d, x, y): e(f"    v_pk_add_f32 v[{d}:{d+1}], v[{x}:{x+1}], v[{y}:{y+1}]")
HP = SR+24
for j in range(3):
    b = SR+8*j
    e(f"    s_waitcnt lgkmcnt({4-2*j})")
    pk(b, b, b+2); pk(b+4, b+4, b+6)
    if j: e(f"    v_add_f32 v{12+2*(j-1)}, v{b-8}, v{b-7}")
    pk(b, b, b+4)
for i in range(6):
    e(f"    v_pk_mul_f32 v[{HP+2*i}:{HP+2*i+1}], v[12:13], v[{WD+2*i}:{WD+2*i+1}] op_sel_hi:[0,1]")
e(f"    v_add_f32 v12, v{SR+16}, v{SR+17}")
for j, src in ((1, 14), (2, 12)):
    for i in range(6):
        w = WD+12*j+2*i
        e(f"    v_pk_fma_f32 v[{HP+2*i}:{HP+2*i+1}], v[{src}:{src+1}], v[{w}:{w+1}], v[{HP+2*i}:{HP+2*i+1}] op_sel_hi:[0,1,1]")
for r in range(6): e(f"    v_permlane32_swap_b32 v{HP+r}, v{HP+r+6}")
for r in range(6): e(f"    v_add_f32 v{HP+r}, v{HP+r}, v{HP+r+6}")
for r in range(3): e(f"    v_permlane16_swap_b32 v{HP+r}, v{HP+r+3}")
for r in range(3): e(f"    v_add_f32 v{8+r}, v{HP+r}, v{HP+r+3}")
for ctl in ("row_ror:8", "row_ror:4", "row_ror:2", "row_ror:1"):
    for r in range(3):
        e(f"    v_add_f32_dpp v{8+r}, v{8+r}, v{8+r} {ctl} row_mask:0xf bank_mask:0xf")
e("""    s_cbranch_execz L_p0
    s_mov_b64 exec, s[56:57]
    buffer_store_dwordx4 v[8:11], v7, s[32:35], s43 offen sc1
    s_mov_b64 exec, -1
    s_waitcnt vmcnt(0)
L_poll:
    s_sub_u32 s54, s54, 1
    s_cbranch_scc1 L_gate""")
for i in range(16):
    e(f"    buffer_load_dwordx4 v[{PR[i]}:{PR[i]+3}], v1, s[32:35], {so(i)} offen offset:{(i%4)*1024} sc1")
    if i in (2, 8):
        e(f"L_p{0 if i == 2 else 1}:")
        e(f"    s_cbranch_execz L_p{1 if i == 2 else 2}")
e("L_p2:")
for i in range(1, 16):
    e(f"    s_waitcnt vmcnt({15-i})")
    a0, a1 = (PR[0], PR[0]+2) if i == 1 else (12, 14)
    pk(12, a0, PR[i]); pk(14, a1, PR[i]+2)
e(f"""    v_cmp_neq_f32 vcc, {f2u(16.0):#x}, v15
    s_cbranch_vccnz L_poll
L_gate:""")
for ctl in ("row_ror:4", "row_ror:8"):
    for j in range(3):
        e(f"    v_add_f32_dpp v{12+j}, v{12+j}, v{12+j} {ctl} row_mask:0xf bank_mask:0xf")
e("""    v_mov_b32 v15, v14
    s_nop 0
    v_permlane32_swap_b32 v12, v13
    v_permlane32_swap_b32 v14, v15
    s_nop 0
    v_add_f32 v12, v12, v13
    v_add_f32 v14, v14, v15
    s_nop 1
    v_permlane16_swap_b32 v12, v14
    s_nop 0
    v_add_f32 v8, v12, v14                  ; z_r, r = 3*(lane&3) + {0,2,1,2}[lane>>4]
    v_mul_f32 v9, s59, v8
    v_exp_f32 v9, v9
    s_nop 0
    v_add_f32 v9, 1.0, v9
    v_rcp_f32 v9, v9
    s_nop 0
    v_mul_f32 v8, v8, v9                    ; h = silu(z)
    s_nop 0""")
for r in range(12):
    e(f"    v_readlane_b32 s{60+r}, v8, {16*{0:0,1:2,2:1}[r % 3] + r//3}")
for r in range(12):
    sp = 60 + (r & ~1)
    w = WUP+2*r
    if r == 0:
        e(f"    v_pk_mul_f32 v[12:13], s[{sp}:{sp+1}], v[{w}:{w+1}] op_sel_hi:[0,1]")
        e(f"    v_pk_mul_f32 v[14:15], s[{sp}:{sp+1}], v[{WUS}:{WUS+1}]")
    elif r % 2 == 0:
        e(f"    v_pk_fma_f32 v[12:13], s[{sp}:{sp+1}], v[{w}:{w+1}], v[12:13] op_sel_hi:[0,1,1]")
        e(f"    v_pk_fma_f32 v[14:15], s[{sp}:{sp+1}], v[{WUS+r}:{WUS+r+1}], v[14:15]")
    else:
        e(f"    v_pk_fma_f32 v[12:13], s[{sp}:{sp+1}], v[{w}:{w+1}], v[12:13] op_sel:[1,0,0] op_sel_hi:[1,1,1]")
e("    v_add_f32 v14, v14, v15")
for j in range(3): e(f"    v_exp_f32 v{12+j}, v{12+j}")
for j in range(3): e(f"    v_add_f32 v{12+j}, 1.0, v{12+j}")
for j in range(3): e(f"    v_rcp_f32 v{12+j}, v{12+j}")
e(f"""    v_cvt_pk_bf16_f32 v13, v12, v13
    v_cvt_pk_bf16_f32 v14, v14, v14
    v_lshlrev_b32 v12, 16, v13
    v_and_b32 v13, s42, v13
    v_and_b32 v14, s42, v14
    ds_write_b64 v2, v[12:13] offset:{GOFF}
    ds_write_b32 v4, v14 offset:{GOFF+512}
    s_waitcnt lgkmcnt(0)
    s_cbranch_execz L_arm
    s_barrier                               ; B2
L_end:
    s_endpgm
.section .rodata,"a"
.p2align 6
.amdhsa_kernel standalone__channel_attn_se__vision_kernel
  .amdhsa_next_free_vgpr 162
  .amdhsa_next_free_sgpr 80
  .amdhsa_accum_offset 164
  .amdhsa_group_segment_fixed_size 0
  .amdhsa_kernarg_size 48
  .amdhsa_user_sgpr_count 2
  .amdhsa_user_sgpr_kernarg_segment_ptr 1
  .amdhsa_system_sgpr_workgroup_id_x 1
  .amdhsa_float_denorm_mode_32 3
.end_amdhsa_kernel""")
open(OUT, 'w').write('\n'.join(L) + '\n')
```

```python
import sys, struct
OUT = sys.argv[1]
OPT = dict(a.split('=') for a in sys.argv[2:])
PRE = int(OPT.get('pre', 4)); LATE = int(OPT.get('late', 1))
NWG, NW, NLOAD = 256, 8, 36
WIN = int(OPT.get('win', 5))
ROUNDS = 13
RACES = 3
DS = [4, 7]
ST = [k for k in range(9) if k not in DS]
ND, NS = len(DS), len(ST)
NSL = 4*NS
STRIPE = 6291456
XBYTES = 56623104
RECOFF = 0x100000
SPIN = 3000000
PSTR = 64*NW*4
GOFF = 3*PSTR
LDS = GOFF + 768
L = []
def e(s=''): L.append(s)
def f2u(x): return struct.unpack('<I', struct.pack('<f', x))[0]

e(f"""; Kernarg layout for this problem (48 bytes, ptrs only, base s[0:1]):
; @launch grid=({NWG},1,1) block=({64*(NW+2)},1,1) lds={LDS}
;
;
;
.amdgcn_target "amdgcn-amd-amdhsa--gfx950"
.text
.globl standalone__channel_attn_se__vision_kernel
.p2align 8
.type standalone__channel_attn_se__vision_kernel,@function
standalone__channel_attn_se__vision_kernel:""")

ACC, T, D = 4, 10, 16
PEEK = 160
DYN = 60
NV = 8*RACES
def dreg(k): return D + 4*k
e(f"""    s_load_dwordx2 s[16:17], s[0:1], 0
    v_readfirstlane_b32 s36, v0             ; wave*64
    v_and_b32 v0, 63, v0                    ; lane
    s_mul_i32 s39, s2, 24576
    s_mov_b32 s18, {XBYTES}
    s_mov_b32 s19, 0x20000
    v_mul_u32_u24 v1, 12, v0
    s_and_b32 s37, s2, 1
    s_mulk_i32 s37, -224
    s_add_u32 s37, s37, s36
    s_mulk_i32 s37, 96
    s_add_u32 s39, s39, s37
    s_cmpk_ge_u32 s2, {NWG}
    s_cbranch_scc1 L_end
    s_cmpk_ge_u32 s36, {64*NW}
    s_cbranch_scc1 L_aux
    s_waitcnt lgkmcnt(0)""")
OPS = []
def after(op): return len(OPS) - 1 - OPS.index(op)
def addr(k, sreg):
    g, j = divmod(k, 4)
    if k < NSL:
        if j == 0 and g: e(f"    s_add_u32 s{sreg}, s{sreg}, {(ST[g]-ST[g-1])*STRIPE}")
        return f"s{sreg} offen offset:{768*j}"
    return f"s{DYN+g-NS} offen offset:{768*j}"
def decide():
    e(f"""    ; ---- split the shared stripes with the pair mate
    s_waitcnt vmcnt({after('peek')})
L_dchk:
    v_readfirstlane_b32 s47, v{PEEK+1}
    v_readfirstlane_b32 s48, v{PEEK}
    s_cmp_ge_u32 s47, {32<<16:#x}
    s_cbranch_scc0 L_dwait
L_dok:
    s_lshr_b32 s50, s47, 8
    s_add_u32 s50, s50, s2
    s_lshr_b32 s50, s50, 2
    s_add_u32 s48, s48, s59
    s_lshr_b32 s51, s48, 6
    s_xor_b32 s51, s51, s48
    s_xor_b32 s51, s51, s45
    s_and_b32 s51, s51, s46
    s_bitcmp1_b32 s51, 17
    s_cselect_b32 s47, 0x115, 0
    s_bitcmp1_b32 s51, 5
    s_cselect_b32 s47, s47, 0""")
    for t in range(ND):
        e(f"""    s_lshr_b32 s51, s48, s{52+t}
    s_xor_b32 s51, s51, s50
    s_lshr_b32 s58, s47, s{55+t}
    s_xor_b32 s51, s51, s58
    s_xor_b32 s51, s51, s{76+t}
    s_bitcmp1_b32 s51, 0
    s_cselect_b32 s58, 0x6000, 0
    s_add_u32 s{DYN+t}, s{DYN+t}, s58""")
    e("""    s_lshr_b32 s51, s47, 8
    s_andn2_b32 s51, s51, s40
    s_bitcmp1_b32 s51, 0
    s_cselect_b64 vcc, 0, -1""")
def issue(k):
    if k == NSL: decide()
    ad = addr(k, 39)
    e(f"    buffer_load_dwordx3 v[{dreg(k)}:{dreg(k)+2}], v1, s[16:19], {ad} nt")
    OPS.append(k)
    if k == NSL - WIN:
        e(f"    buffer_load_dwordx2 v[{PEEK}:{PEEK+1}], off, s[72:75], 0 offset:128 sc1")
        OPS.append('peek')
for k in range(PRE): issue(k)
packed = 0
for n, d in enumerate(DS + DS[:-1]): packed |= d << (4*n)
e(f"""    s_load_dwordx2 s[20:21], s[0:1], 24
    s_load_dwordx2 s[72:73], s[0:1], 32
    s_mov_b32 s41, s39
    s_mov_b32 s22, {XBYTES}
    s_mov_b32 s23, 0x20000
    s_movk_i32 s74, 0x100
    s_mov_b32 s75, 0x20000""")
if not LATE:
    for k in range(PRE, WIN): issue(k)
e(f"""    s_mov_b32 s42, 0xffff0000
    v_and_b32 v3, 31, v0
    v_mul_u32_u24 v3, 24, v3
    s_bfe_u32 s38, s36, 0x40004             ; (wave&3)*4
    s_and_b32 s37, s36, 0x100
    s_lshl2_add_u32 s38, s37, s38
    v_lshl_add_u32 v2, v0, 4, s38
    s_getreg_b32 s40, hwreg(HW_REG_XCC_ID)
    s_lshr_b32 s43, s2, 3                   ; row
    s_and_b32 s44, s2, 3
    s_lshl2_add_u32 s44, s43, s44           ; pair
    s_mul_i32 s44, s44, 49152
    s_mul_i32 s38, s36, 48
    s_add_u32 s44, s44, s38
    s_and_b32 s45, s43, 1
    s_lshl_b32 s45, s45, 2
    s_lshr_b32 s45, {packed:#x}, s45
    s_lshr_b32 s43, s43, 1
    s_waitcnt lgkmcnt(0)""")
for t in range(ND):
    e(f"""    s_bfe_u32 s51, s45, {0x40000+4*t:#x}
    s_mul_i32 s{DYN+t}, s51, {STRIPE}
    s_add_u32 s{DYN+t}, s{DYN+t}, s44
    s_add_u32 s58, s51, s43
    s_and_b32 s58, s58, 3
    s_cmp_ge_u32 s51, 6
    s_cselect_b32 s{52+t}, 23, 11
    s_cselect_b32 s{55+t}, 4, 0
    s_add_u32 s{55+t}, s{55+t}, s58
    s_add_u32 s58, s{DYN+t}, s20
    s_add_u32 s58, s58, 1536
    s_lshr_b32 s{76+t}, s58, 8
    s_xor_b32 s{76+t}, s{76+t}, s58
    s_lshr_b32 s{76+t}, s{76+t}, 13""")
e(f"""    s_mov_b32 s49, {SPIN}
    s_add_u32 s45, s16, 0x100800
    s_add_u32 s46, s20, 0x100800
    s_xor_b32 s45, s45, s46
    s_lshr_b32 s46, s45, 8
    s_xor_b32 s45, s45, s46
    s_bitcmp1_b32 s45, 13
    s_cselect_b32 s45, -1, 0
    s_sub_u32 s46, s16, s20
    s_add_u32 s46, s46, 0x800
    s_bitcmp1_b32 s46, 12
    s_cselect_b32 s46, 0, -1
    s_cselect_b32 s59, {32-(NV+1)}, {32-(NV//2+1)}
    s_mul_i32 s59, s59, 0x41041
    ; ---- phase 1: stream x into VGPRs ({WIN} loads in flight per wave), accumulate 6 channels in fp32""")
if LATE:
    for k in range(PRE, WIN): issue(k)
for k in range(NLOAD):
    e(f"    s_waitcnt vmcnt({after(k)})")
    if k + WIN < NLOAD: issue(k+WIN)
    for i in range(3):
        d = dreg(k)+i
        t = (ACC if k == 0 else T) + 2*i
        e(f"    v_lshlrev_b32 v{t}, 16, v{d}")
        e(f"    v_and_b32 v{t+1}, s42, v{d}")
    if k:
        for i in range(3):
            t = T + 2*i
            e(f"    v_pk_add_f32 v[{ACC+2*i}:{ACC+2*i+1}], v[{ACC+2*i}:{ACC+2*i+1}], v[{t}:{t+1}]")
e("    s_nop 0")
for j in range(3):
    e(f"    v_permlane32_swap_b32 v{ACC+j}, v{ACC+j+3}")
for j in range(3):
    e(f"    v_add_f32 v{ACC+j}, v{ACC+j}, v{ACC+j+3}")
    e(f"    ds_write_b32 v2, v{ACC+j} offset:{j*PSTR}")
e(f"""    s_waitcnt lgkmcnt(0)
    s_barrier
    s_barrier
L_store:
    ds_read_b64 v[{ACC}:{ACC+1}], v3 offset:{GOFF}
    ds_read_b64 v[{ACC+2}:{ACC+3}], v3 offset:{GOFF+8}
    ds_read_b64 v[{ACC+4}:{ACC+5}], v3 offset:{GOFF+16}""")
stat = list(range(NSL)); dyn = list(range(NSL, NLOAD)); order = []
while stat or dyn:
    if dyn and (not stat or (len(order)+1)*ND >= (len([q for q in order if q >= NSL])+1)*9): order.append(dyn.pop(0))
    else: order.append(stat.pop(0))
for n, k in enumerate(order):
    for i in range(3):
        d = dreg(k)+i; t = T + 2*i
        e(f"    v_lshlrev_b32 v{t}, 16, v{d}")
        e(f"    v_and_b32 v{t+1}, s42, v{d}")
    if n == 0: e("    s_waitcnt lgkmcnt(0)")
    for i in range(3):
        t = T + 2*i
        e(f"    v_pk_mul_f32 v[{t}:{t+1}], v[{t}:{t+1}], v[{ACC+2*i}:{ACC+2*i+1}]")
    for i in range(3):
        d = dreg(k)+i; t = T + 2*i
        e(f"    v_cvt_pk_bf16_f32 v{d}, v{t}, v{t+1}")
    ad = addr(k, 41)
    if n >= 1 and (n*ROUNDS)//NLOAD != ((n-1)*ROUNDS)//NLOAD:
        e(f"    s_cbranch_vccnz L_th{n}")
        e("    s_waitcnt vmcnt(0)")
        e(f"L_th{n}:")
    e(f"    s_cbranch_execz L_sk{n}")
    e(f"    buffer_store_dwordx3 v[{dreg(k)}:{dreg(k)+2}], v1, s[20:23], {ad} sc1")
    e(f"L_sk{n}:")
e(f"""    s_endpgm
L_dwait:
    s_sub_u32 s49, s49, 1
    s_cbranch_scc1 L_dok
    buffer_load_dwordx2 v[{PEEK}:{PEEK+1}], off, s[72:75], 0 offset:128 sc1
    s_waitcnt vmcnt(0)
    s_branch L_dchk""")

e(f"""    ; ================= helper wave =================
L_aux:
    s_cmpk_eq_u32 s36, {64*NW}
    s_cbranch_scc1 L_sync
    s_load_dwordx2 s[20:21], s[0:1], 24     ; out
    s_mov_b32 s22, s18
    s_mov_b32 s23, 0x20000
    s_cmp_ge_u32 s2, 56
    s_cbranch_scc1 L_warm
    s_load_dwordx4 s[12:15], s[0:1], 32
    s_setprio 3
    s_mov_b32 s46, 256
    s_mov_b32 s47, 0x20000
    s_cmp_lt_u32 s2, 8
    s_cbranch_scc1 L_clear
    s_lshr_b32 s50, s2, 3
    s_sub_u32 s50, s50, 1                   ; t
    s_and_b32 s51, s2, 15
    s_and_b32 s52, s2, 2
    s_bitcmp1_b32 s50, 1
    s_cselect_b32 s53, {3*DS[1]}, {3*DS[0]}
    s_add_u32 s52, s52, s53
    s_bitcmp1_b32 s50, 2
    s_cselect_b32 s52, 0, s52
    s_lshl_b32 s52, s52, 21
    s_lshl_b32 s53, s51, 14
    s_add_u32 s52, s52, s53
    s_add_u32 s52, s52, {RECOFF+0x10000:#x}
    s_lshl_b32 s53, s51, 11
    s_and_b32 s53, s53, 0x1000
    s_lshl_b32 s51, s51, 8
    s_add_u32 s53, s53, s51
    s_getreg_b32 s40, hwreg(HW_REG_XCC_ID)
    s_and_b32 s40, s40, 7
    s_mov_b32 s54, 0
    s_waitcnt lgkmcnt(0)
    s_sub_u32 s55, s16, s20
    s_add_u32 s55, s55, 0x800
    s_bfe_u32 s55, s55, 0x1000c
    s_or_b32 s50, s50, s55
    s_bitcmp1_b32 s50, 0
    s_cselect_b32 s62, s20, s16
    s_cselect_b32 s63, s21, s17
    s_bitcmp1_b32 s50, 2
    s_cselect_b32 s62, s14, s62
    s_cselect_b32 s63, s15, s63
    s_add_u32 s62, s62, s52
    s_addc_u32 s63, s63, 0
    s_and_b32 s62, s62, 0xffffc000
    s_or_b32 s62, s62, s53
    s_lshr_b32 s56, s62, 19
    s_xor_b32 s56, s56, s40
    ; scalar loads answer in order and count 1 (dword) / 2 (dwordx2): a count of 2 = the first one was quicker""")
for r in range(RACES):
    f, g2 = (0, 8192) if r % 2 == 0 else (8192, 0)
    e(f"""    s_load_dword s64, s[62:63], {f} glc
    s_load_dwordx2 s[66:67], s[62:63], {g2} glc
    s_waitcnt lgkmcnt(2)
    s_nop 3
    s_getreg_b32 s65, hwreg(HW_REG_IB_STS, 8, 4)
    s_waitcnt lgkmcnt(0)
    s_cmp_{'eq' if r % 2 == 0 else 'lg'}_u32 s65, 2
    s_addc_u32 s54, s54, 0""")
e(f"""    s_mov_b32 s44, s12
    s_and_b32 s45, s13, 0xffff
    s_sub_u32 s55, {RACES}, s54
    s_bitcmp1_b32 s56, 2
    s_cselect_b32 s54, s54, s55
    s_mov_b64 exec, 1
    s_bitcmp1_b32 s50, 2
    s_cbranch_scc1 L_wsvote
    s_mul_i32 s50, s50, 6
    s_lshl_b32 s54, s54, s50
    s_lshl_b32 s40, s40, 8
    s_cmp_eq_u32 s2, 8
    s_cselect_b32 s55, s40, 0
    s_add_u32 s55, s55, 0x10000
    v_mov_b32 v4, s54
    v_mov_b32 v5, s55
    buffer_atomic_add_x2 v[4:5], off, s[44:47], 0 offset:128
L_warm:""")
if OPT.get('tlb'):
    e(f"""    s_mov_b64 exec, 0x1ff
    s_mov_b32 s41, {STRIPE}
    v_mul_lo_u32 v6, s41, v0
    s_mul_i32 s41, s2, 24576
    s_waitcnt lgkmcnt(0)
    buffer_load_dword v7, v6, s[20:23], s41 offen nt""")
e(f"""    ; walk phase 2 with EXEC=0 (every store branched over) so that it is in the instruction cache, then end
    s_setprio 0
    s_mov_b64 vcc, -1
    s_mov_b64 exec, 0
    s_branch L_store
L_wsvote:
    s_add_u32 s54, s54, 0x8000
    v_mov_b32 v4, s54
    buffer_atomic_add v4, off, s[44:47], 0 offset:64
    s_branch L_warm
L_clear:
    v_mov_b32 v8, 0
    v_mov_b32 v9, 0
    v_mov_b32 v10, 0
    v_mov_b32 v11, 0
    v_lshlrev_b32 v1, 4, v0
    s_lshl_b32 s53, s2, 12
    s_mov_b32 s34, 32768
    s_mov_b32 s35, 0x20000
    s_waitcnt lgkmcnt(0)
    s_add_u32 s32, s14, {RECOFF}
    s_addc_u32 s33, s15, 0
    s_and_b32 s32, s32, 0xffffc000
    s_and_b32 s33, s33, 0xffff
    s_mov_b32 s44, s12
    s_and_b32 s45, s13, 0xffff""")
for i in range(4):
    e(f"    buffer_store_dwordx4 v[8:11], v1, s[32:35], s53 offen offset:{i*1024} sc1")
e("""    v_mov_b32 v5, 0x10000
    s_waitcnt vmcnt(0)
    s_mov_b64 exec, 1
    buffer_atomic_add v5, off, s[44:47], 0
    s_branch L_warm""")

WUP, WUS, WD, SR = 16, 40, 52, 88
PR = [52+4*i for i in range(16)]
def so(i): return ['0', 's50', 's51', 's52'][i//4]
e(f"""    ; ================= sync wave =================
L_sync:
    s_load_dwordx2 s[24:25], s[0:1], 8
    s_load_dwordx2 s[28:29], s[0:1], 16
    s_load_dwordx4 s[12:15], s[0:1], 32
    v_lshlrev_b32 v1, 4, v0                 ; lane*16
    v_lshlrev_b32 v4, 2, v0                 ; lane*4
    v_and_b32 v9, 1, v0
    v_lshlrev_b32 v7, 13, v9
    v_and_b32 v6, 48, v0
    v_add_u32 v7, v7, v6
    v_lshlrev_b32 v9, 6, v9
    v_and_b32 v5, 31, v0
    v_lshrrev_b32 v6, 5, v0
    v_lshl_add_u32 v6, v5, 1, v6
    v_mul_u32_u24 v6, 72, v6
    v_lshlrev_b32 v2, 1, v0                 ; lane*2
    v_lshlrev_b32 v3, 4, v0
    s_mov_b32 s26, 4608
    s_mov_b32 s27, 0x20000
    s_mov_b32 s30, 4608
    s_mov_b32 s31, 0x20000
    s_mov_b32 s34, 32768
    s_mov_b32 s35, 0x20000
    s_mov_b32 s46, 256
    s_mov_b32 s47, 0x20000
    s_movk_i32 s50, 0x1000
    s_movk_i32 s51, 0x4000
    s_movk_i32 s52, 0x5000
    s_movk_i32 s53, 0x900
    s_mov_b32 s42, 0xffff0000
    s_and_b32 s43, s2, 127
    s_lshl_b32 s43, s43, 6
    s_lshr_b32 s55, s2, 7
    s_lshl_b32 s55, s55, 14
    s_add_u32 s43, s43, s55
    s_mov_b32 s54, {SPIN}
    s_mov_b32 s56, 0x00030003
    s_mov_b32 s57, 0x00030003
    s_mov_b32 s58, 0x36e38e39               ; 1/147456
    s_mov_b32 s59, 0xbfb8aa3b               ; -log2(e)
    s_waitcnt lgkmcnt(0)
    s_add_u32 s32, s14, {RECOFF}
    s_addc_u32 s33, s15, 0
    s_and_b32 s32, s32, 0xffffc000
    s_and_b32 s33, s33, 0xffff
    s_mov_b32 s44, s12
    s_and_b32 s45, s13, 0xffff
    s_mov_b64 exec, 0
    s_branch L_crit
L_arm:
    s_mov_b64 exec, -1
    s_setprio 3""")
for i in range(4):
    e(f"    buffer_load_dwordx4 v[{SR+4*i}:{SR+4*i+3}], v6, s[24:27], 0 offen offset:{16*i}")
e(f"    buffer_load_dwordx2 v[{SR+16}:{SR+17}], v6, s[24:27], 0 offen offset:64")
for i in range(12):
    e(f"    v_mov_b32 v{WUS+i}, 0")
RU = SR+20
def wu(op, reg, ad, off):
    if off < 4096: e(f"    {op} v{reg}, {ad}, s[28:31], 0 offen offset:{off}")
    else: e(f"    {op} v{reg}, {ad}, s[28:31], s53 offen offset:{off-2304}")
for r in range(12): wu("buffer_load_dword", RU+r, "v4", r*384)
for r in range(12): wu("buffer_load_short_d16_hi", WUS+r, "v2", r*384+256)
e("""    s_waitcnt vmcnt(0)
    ; weights to fp32; 1/(H*W) folded into w_down, -log2(e) into w_up""")
for i in range(18):
    e(f"    v_lshlrev_b32 v{WD+2*i}, 16, v{SR+i}")
    e(f"    v_and_b32 v{WD+2*i+1}, s42, v{SR+i}")
for r in range(12):
    e(f"    v_lshlrev_b32 v{WUP+2*r}, 16, v{RU+r}")
    e(f"    v_and_b32 v{WUP+2*r+1}, s42, v{RU+r}")
for i in range(36): e(f"    v_mul_f32 v{WD+i}, s58, v{WD+i}")
for i in range(36): e(f"    v_mul_f32 v{WUP+i}, s59, v{WUP+i}")
e(f"""L_flag:
    buffer_load_dword v5, v9, s[44:47], 0 offen sc1
    s_sub_u32 s54, s54, 1
    s_cbranch_scc1 L_flagok
    s_waitcnt vmcnt(0)
    v_cmp_gt_u32 vcc, 0x80000, v5
    s_cbranch_vccz L_flagok
    s_sleep 8
    s_branch L_flag
L_flagok:
    s_waitcnt vmcnt(0)
    s_getreg_b32 s55, hwreg(HW_REG_XCC_ID)
    v_readlane_b32 s37, v5, 1
    s_lshr_b32 s55, s55, 2
    s_lshr_b32 s38, s32, 21
    s_xor_b32 s55, s55, s38
    s_add_u32 s37, s37, {64-(16*RACES//2+1)}
    s_lshr_b32 s37, s37, 6
    s_xor_b32 s55, s55, s37
    s_and_b32 s55, s55, 1
    s_lshl_b32 s55, s55, 13
    v_add_u32 v1, s55, v1
    v_mov_b32 v11, 1.0
    v_lshlrev_b32 v2, 3, v0                 ; lane*8
    s_mov_b32 s54, {SPIN}
L_crit:
    s_cbranch_execz L_c1
    s_barrier                               ; B1
L_c1:
    ; sum the 8 waves' partials of this lane's 3 channels, project on w_down""")
for j in range(3):
    for q in range(2):
        b = SR+8*j+4*q
        e(f"    ds_read_b128 v[{b}:{b+3}], v3 offset:{j*PSTR+1024*q}")
def pk(d, x, y): e(f"    v_pk_add_f32 v[{d}:{d+1}], v[{x}:{x+1}], v[{y}:{y+1}]")
HP = SR+24
for j in range(3):
    b = SR+8*j
    e(f"    s_waitcnt lgkmcnt({4-2*j})")
    pk(b, b, b+2); pk(b+4, b+4, b+6)
    if j: e(f"    v_add_f32 v{12+2*(j-1)}, v{b-8}, v{b-7}")
    pk(b, b, b+4)
for i in range(6):
    e(f"    v_pk_mul_f32 v[{HP+2*i}:{HP+2*i+1}], v[12:13], v[{WD+2*i}:{WD+2*i+1}] op_sel_hi:[0,1]")
e(f"    v_add_f32 v12, v{SR+16}, v{SR+17}")
for j, src in ((1, 14), (2, 12)):
    for i in range(6):
        w = WD+12*j+2*i
        e(f"    v_pk_fma_f32 v[{HP+2*i}:{HP+2*i+1}], v[{src}:{src+1}], v[{w}:{w+1}], v[{HP+2*i}:{HP+2*i+1}] op_sel_hi:[0,1,1]")
for r in range(6): e(f"    v_permlane32_swap_b32 v{HP+r}, v{HP+r+6}")
for r in range(6): e(f"    v_add_f32 v{HP+r}, v{HP+r}, v{HP+r+6}")
for r in range(3): e(f"    v_permlane16_swap_b32 v{HP+r}, v{HP+r+3}")
for r in range(3): e(f"    v_add_f32 v{8+r}, v{HP+r}, v{HP+r+3}")
for ctl in ("row_ror:8", "row_ror:4", "row_ror:2", "row_ror:1"):
    for r in range(3):
        e(f"    v_add_f32_dpp v{8+r}, v{8+r}, v{8+r} {ctl} row_mask:0xf bank_mask:0xf")
e("""    s_cbranch_execz L_p0
    s_mov_b64 exec, s[56:57]
    buffer_store_dwordx4 v[8:11], v7, s[32:35], s43 offen sc1
    s_mov_b64 exec, -1
    s_waitcnt vmcnt(0)
L_poll:
    s_sub_u32 s54, s54, 1
    s_cbranch_scc1 L_gate""")
for i in range(16):
    e(f"    buffer_load_dwordx4 v[{PR[i]}:{PR[i]+3}], v1, s[32:35], {so(i)} offen offset:{(i%4)*1024} sc1")
    if i in (2, 8):
        e(f"L_p{0 if i == 2 else 1}:")
        e(f"    s_cbranch_execz L_p{1 if i == 2 else 2}")
e("L_p2:")
for i in range(1, 16):
    e(f"    s_waitcnt vmcnt({15-i})")
    a0, a1 = (PR[0], PR[0]+2) if i == 1 else (12, 14)
    pk(12, a0, PR[i]); pk(14, a1, PR[i]+2)
e(f"""    v_cmp_neq_f32 vcc, {f2u(16.0):#x}, v15
    s_cbranch_vccnz L_poll
L_gate:""")
for ctl in ("row_ror:4", "row_ror:8"):
    for j in range(3):
        e(f"    v_add_f32_dpp v{12+j}, v{12+j}, v{12+j} {ctl} row_mask:0xf bank_mask:0xf")
e("""    v_mov_b32 v15, v14
    s_nop 0
    v_permlane32_swap_b32 v12, v13
    v_permlane32_swap_b32 v14, v15
    s_nop 0
    v_add_f32 v12, v12, v13
    v_add_f32 v14, v14, v15
    s_nop 1
    v_permlane16_swap_b32 v12, v14
    s_nop 0
    v_add_f32 v8, v12, v14                  ; z_r, r = 3*(lane&3) + {0,2,1,2}[lane>>4]
    v_mul_f32 v9, s59, v8
    v_exp_f32 v9, v9
    s_nop 0
    v_add_f32 v9, 1.0, v9
    v_rcp_f32 v9, v9
    s_nop 0
    v_mul_f32 v8, v8, v9                    ; h = silu(z)
    s_nop 0""")
for r in range(12):
    e(f"    v_readlane_b32 s{60+r}, v8, {16*{0:0,1:2,2:1}[r % 3] + r//3}")
for r in range(12):
    sp = 60 + (r & ~1)
    w = WUP+2*r
    if r == 0:
        e(f"    v_pk_mul_f32 v[12:13], s[{sp}:{sp+1}], v[{w}:{w+1}] op_sel_hi:[0,1]")
        e(f"    v_pk_mul_f32 v[14:15], s[{sp}:{sp+1}], v[{WUS}:{WUS+1}]")
    elif r % 2 == 0:
        e(f"    v_pk_fma_f32 v[12:13], s[{sp}:{sp+1}], v[{w}:{w+1}], v[12:13] op_sel_hi:[0,1,1]")
        e(f"    v_pk_fma_f32 v[14:15], s[{sp}:{sp+1}], v[{WUS+r}:{WUS+r+1}], v[14:15]")
    else:
        e(f"    v_pk_fma_f32 v[12:13], s[{sp}:{sp+1}], v[{w}:{w+1}], v[12:13] op_sel:[1,0,0] op_sel_hi:[1,1,1]")
e("    v_add_f32 v14, v14, v15")
for j in range(3): e(f"    v_exp_f32 v{12+j}, v{12+j}")
for j in range(3): e(f"    v_add_f32 v{12+j}, 1.0, v{12+j}")
for j in range(3): e(f"    v_rcp_f32 v{12+j}, v{12+j}")
e(f"""    v_cvt_pk_bf16_f32 v13, v12, v13
    v_cvt_pk_bf16_f32 v14, v14, v14
    v_lshlrev_b32 v12, 16, v13
    v_and_b32 v13, s42, v13
    v_and_b32 v14, s42, v14
    ds_write_b64 v2, v[12:13] offset:{GOFF}
    ds_write_b32 v4, v14 offset:{GOFF+512}
    s_waitcnt lgkmcnt(0)
    s_cbranch_execz L_arm
    s_barrier                               ; B2
L_end:
    s_endpgm
.section .rodata,"a"
.p2align 6
.amdhsa_kernel standalone__channel_attn_se__vision_kernel
  .amdhsa_next_free_vgpr 162
  .amdhsa_next_free_sgpr 80
  .amdhsa_accum_offset 164
  .amdhsa_group_segment_fixed_size 0
  .amdhsa_kernarg_size 48
  .amdhsa_user_sgpr_count 2
  .amdhsa_user_sgpr_kernarg_segment_ptr 1
  .amdhsa_system_sgpr_workgroup_id_x 1
  .amdhsa_float_denorm_mode_32 3
.end_amdhsa_kernel""")
open(OUT, 'w').write('\n'.join(L) + '\n')
```

```python
import sys, struct
OUT = sys.argv[1]
OPT = dict(a.split('=') for a in sys.argv[2:])
PRE = int(OPT.get('pre', 4)); LATE = int(OPT.get('late', 1))
NWG, NW, NLOAD = 256, 8, 36
WIN = int(OPT.get('win', 5))
ROUNDS = 13
RACES = 3
DS = [4, 7]
ST = [k for k in range(9) if k not in DS]
ND, NS = len(DS), len(ST)
NSL = 4*NS
STRIPE = 6291456
XBYTES = 56623104
RECOFF = 0x100000
SPIN = 3000000
PSTR = 64*NW*4
GOFF = 3*PSTR
LDS = GOFF + 768
L = []
def e(s=''): L.append(s)
def f2u(x): return struct.unpack('<I', struct.pack('<f', x))[0]

e(f"""; Kernarg layout for this problem (48 bytes, ptrs only, base s[0:1]):
; @launch grid=({NWG},1,1) block=({64*(NW+2)},1,1) lds={LDS}
;
;
;   helper wave (9)    workgroups 0..7 clear the records and count in d_debug[0] (zero at launch); no sync wave
;
; unknown per-allocation bit) and the link between them limits the store phase.  Helper waves find that bit by racing
.amdgcn_target "amdgcn-amd-amdhsa--gfx950"
.text
.globl standalone__channel_attn_se__vision_kernel
.p2align 8
.type standalone__channel_attn_se__vision_kernel,@function
standalone__channel_attn_se__vision_kernel:""")
ENC = int(OPT.get('enc', 0))
if ENC: e("    s_memrealtime s[80:81]")

ACC, T, D = 4, 10, 16
PEEK = 160
DYN = 60
NV = 8*RACES
def dreg(k): return D + 4*k
e(f"""    s_load_dwordx2 s[16:17], s[0:1], 0
    v_readfirstlane_b32 s36, v0             ; wave*64
    v_and_b32 v0, 63, v0                    ; lane
    s_mul_i32 s39, s2, 24576
    s_mov_b32 s18, {XBYTES}
    s_mov_b32 s19, 0x20000
    v_mul_u32_u24 v1, 12, v0
    s_and_b32 s37, s2, 1
    s_mulk_i32 s37, -224
    s_add_u32 s37, s37, s36
    s_mulk_i32 s37, 96
    s_add_u32 s39, s39, s37
    s_cmpk_ge_u32 s2, {NWG}
    s_cbranch_scc1 L_end
    s_cmpk_ge_u32 s36, {64*NW}
    s_cbranch_scc1 L_aux                    ; sync wave, helper wave
    s_waitcnt lgkmcnt(0)""")
OPS = []
def after(op): return len(OPS) - 1 - OPS.index(op)
def addr(k, sreg):
    g, j = divmod(k, 4)
    if k < NSL:
        if j == 0 and g: e(f"    s_add_u32 s{sreg}, s{sreg}, {(ST[g]-ST[g-1])*STRIPE}")
        return f"s{sreg} offen offset:{768*j}"
    return f"s{DYN+g-NS} offen offset:{768*j}"
def decide():
    e(f"""    ; ---- split the shared stripes with the pair mate
    s_waitcnt vmcnt({after('peek')})
L_dchk:
    v_readfirstlane_b32 s47, v{PEEK+1}
    v_readfirstlane_b32 s48, v{PEEK}
    s_cmp_ge_u32 s47, {32<<16:#x}
    s_cbranch_scc0 L_dwait
L_dok:
    s_lshr_b32 s50, s47, 8
    s_add_u32 s50, s50, s2
    s_lshr_b32 s50, s50, 2
    s_add_u32 s48, s48, s59
    s_lshr_b32 s51, s48, 6
    s_xor_b32 s51, s51, s48
    s_xor_b32 s51, s51, s45
    s_and_b32 s51, s51, s46
    s_bitcmp1_b32 s51, 17
    s_cselect_b32 s47, 0x115, 0
    s_bitcmp1_b32 s51, 5
    s_cselect_b32 s47, s47, 0""")
    for t in range(ND):
        e(f"""    s_lshr_b32 s51, s48, s{52+t}
    s_xor_b32 s51, s51, s50
    s_lshr_b32 s58, s47, s{55+t}
    s_xor_b32 s51, s51, s58
    s_xor_b32 s51, s51, s{76+t}
    s_bitcmp1_b32 s51, 0
    s_cselect_b32 s58, 0x6000, 0
    s_add_u32 s{DYN+t}, s{DYN+t}, s58""")
    e("""    s_lshr_b32 s51, s47, 8
    s_andn2_b32 s51, s51, s40
    s_bitcmp1_b32 s51, 0
    s_cselect_b64 vcc, 0, -1""")
def issue(k):
    if k == NSL: decide()
    ad = addr(k, 39)
    e(f"    buffer_load_dwordx3 v[{dreg(k)}:{dreg(k)+2}], v1, s[16:19], {ad} nt")
    OPS.append(k)
    if k == NSL - WIN:
        e(f"    buffer_load_dwordx2 v[{PEEK}:{PEEK+1}], off, s[72:75], 0 offset:128 sc1")
        OPS.append('peek')
for k in range(PRE): issue(k)
packed = 0
for n, d in enumerate(DS + DS[:-1]): packed |= d << (4*n)
e(f"""    s_load_dwordx2 s[20:21], s[0:1], 24
    s_load_dwordx2 s[72:73], s[0:1], 32
    s_mov_b32 s41, s39
    s_mov_b32 s22, {XBYTES}
    s_mov_b32 s23, 0x20000
    s_movk_i32 s74, 0x100
    s_mov_b32 s75, 0x20000""")
if not LATE:
    for k in range(PRE, WIN): issue(k)
e(f"""    s_mov_b32 s42, 0xffff0000
    v_and_b32 v3, 31, v0
    v_mul_u32_u24 v3, 24, v3
    s_bfe_u32 s38, s36, 0x40004             ; (wave&3)*4
    s_and_b32 s37, s36, 0x100
    s_lshl2_add_u32 s38, s37, s38
    v_lshl_add_u32 v2, v0, 4, s38
    s_getreg_b32 s40, hwreg(HW_REG_XCC_ID)
    s_lshr_b32 s43, s2, 3                   ; row
    s_and_b32 s44, s2, 3
    s_lshl2_add_u32 s44, s43, s44           ; pair
    s_mul_i32 s44, s44, 49152
    s_mul_i32 s38, s36, 48
    s_add_u32 s44, s44, s38
    s_and_b32 s45, s43, 1
    s_lshl_b32 s45, s45, 2
    s_lshr_b32 s45, {packed:#x}, s45
    s_lshr_b32 s43, s43, 1
    s_waitcnt lgkmcnt(0)""")
for t in range(ND):
    e(f"""    s_bfe_u32 s51, s45, {0x40000+4*t:#x}
    s_mul_i32 s{DYN+t}, s51, {STRIPE}
    s_add_u32 s{DYN+t}, s{DYN+t}, s44
    s_add_u32 s58, s51, s43
    s_and_b32 s58, s58, 3
    s_cmp_ge_u32 s51, 6
    s_cselect_b32 s{52+t}, 23, 11
    s_cselect_b32 s{55+t}, 4, 0
    s_add_u32 s{55+t}, s{55+t}, s58
    s_add_u32 s58, s{DYN+t}, s20
    s_add_u32 s58, s58, 1536
    s_lshr_b32 s{76+t}, s58, 8
    s_xor_b32 s{76+t}, s{76+t}, s58
    s_lshr_b32 s{76+t}, s{76+t}, 13""")
e(f"""    s_mov_b32 s49, {SPIN}
    s_add_u32 s45, s16, 0x100800
    s_add_u32 s46, s20, 0x100800
    s_xor_b32 s45, s45, s46
    s_lshr_b32 s46, s45, 8
    s_xor_b32 s45, s45, s46
    s_bitcmp1_b32 s45, 13
    s_cselect_b32 s45, -1, 0
    s_sub_u32 s46, s16, s20
    s_add_u32 s46, s46, 0x800
    s_bitcmp1_b32 s46, 12
    s_cselect_b32 s46, 0, -1
    s_cselect_b32 s59, {32-(NV+1)}, {32-(NV//2+1)}
    s_mul_i32 s59, s59, 0x41041
    ; ---- phase 1: stream x into VGPRs ({WIN} loads in flight per wave), accumulate 6 channels in fp32""")
if LATE:
    for k in range(PRE, WIN): issue(k)
for k in range(NLOAD):
    e(f"    s_waitcnt vmcnt({after(k)})")
    if k + WIN < NLOAD: issue(k+WIN)
    for i in range(3):
        d = dreg(k)+i
        t = (ACC if k == 0 else T) + 2*i
        e(f"    v_lshlrev_b32 v{t}, 16, v{d}")
        e(f"    v_and_b32 v{t+1}, s42, v{d}")
    if k:
        for i in range(3):
            t = T + 2*i
            e(f"    v_pk_add_f32 v[{ACC+2*i}:{ACC+2*i+1}], v[{ACC+2*i}:{ACC+2*i+1}], v[{t}:{t+1}]")
e("    s_nop 0")
for j in range(3):
    e(f"    v_permlane32_swap_b32 v{ACC+j}, v{ACC+j+3}")
for j in range(3):
    e(f"    v_add_f32 v{ACC+j}, v{ACC+j}, v{ACC+j+3}")
    e(f"    ds_write_b32 v2, v{ACC+j} offset:{j*PSTR}")
e(f"""    s_waitcnt lgkmcnt(0)
    s_barrier
    s_barrier
L_store:
    ds_read_b64 v[{ACC}:{ACC+1}], v3 offset:{GOFF}
    ds_read_b64 v[{ACC+2}:{ACC+3}], v3 offset:{GOFF+8}
    ds_read_b64 v[{ACC+4}:{ACC+5}], v3 offset:{GOFF+16}""")
stat = list(range(NSL)); dyn = list(range(NSL, NLOAD)); order = []
while stat or dyn:
    if dyn and (not stat or (len(order)+1)*ND >= (len([q for q in order if q >= NSL])+1)*9): order.append(dyn.pop(0))
    else: order.append(stat.pop(0))
for n, k in enumerate(order):
    for i in range(3):
        d = dreg(k)+i; t = T + 2*i
        e(f"    v_lshlrev_b32 v{t}, 16, v{d}")
        e(f"    v_and_b32 v{t+1}, s42, v{d}")
    if n == 0: e("    s_waitcnt lgkmcnt(0)")
    for i in range(3):
        t = T + 2*i
        e(f"    v_pk_mul_f32 v[{t}:{t+1}], v[{t}:{t+1}], v[{ACC+2*i}:{ACC+2*i+1}]")
    for i in range(3):
        d = dreg(k)+i; t = T + 2*i
        e(f"    v_cvt_pk_bf16_f32 v{d}, v{t}, v{t+1}")
    ad = addr(k, 41)
    if n >= 1 and (n*ROUNDS)//NLOAD != ((n-1)*ROUNDS)//NLOAD:
        e(f"    s_cbranch_vccnz L_th{n}")
        e("    s_waitcnt vmcnt(0)")
        e(f"L_th{n}:")
    e(f"    s_cbranch_execz L_sk{n}")
    e(f"    buffer_store_dwordx3 v[{dreg(k)}:{dreg(k)+2}], v1, s[20:23], {ad} sc1")
    e(f"L_sk{n}:")
if ENC:
    e("    s_cbranch_execz L_end")
    e("    s_add_u32 s96, s80, 10000")
    if ENC == 3:
        e(f"    s_sub_u32 s97, {SPIN}, s49\n    s_mul_i32 s97, s97, 1000\n    s_add_u32 s96, s96, s97")
    if ENC == 5:
        e("    s_bfe_u32 s97, s48, 0x60006\n    s_mul_i32 s97, s97, 100\n    s_add_u32 s96, s96, s97")
    if ENC == 6:
        e("    s_bfe_u32 s97, s48, 0x60012\n    s_mul_i32 s97, s97, 100\n    s_add_u32 s96, s96, s97")
    e("""L_hold:
    s_memrealtime s[98:99]
    s_waitcnt lgkmcnt(0)
    s_sub_u32 s97, s96, s98
    s_cmp_gt_i32 s97, 0
    s_cbranch_scc0 L_end
    s_sleep 8
    s_branch L_hold""")
e(f"""    s_endpgm
L_dwait:
    s_sub_u32 s49, s49, 1
    s_cbranch_scc1 L_dok
    buffer_load_dwordx2 v[{PEEK}:{PEEK+1}], off, s[72:75], 0 offset:128 sc1
    s_waitcnt vmcnt(0)
    s_branch L_dchk""")

e(f"""    ; ================= helper wave =================
L_aux:
    s_cmpk_eq_u32 s36, {64*NW}
    s_cbranch_scc1 L_sync
    s_load_dwordx2 s[20:21], s[0:1], 24     ; out
    s_mov_b32 s22, s18
    s_mov_b32 s23, 0x20000
    s_cmp_ge_u32 s2, 56
    s_cbranch_scc1 L_warm
    s_load_dwordx4 s[12:15], s[0:1], 32
    s_setprio 3
    s_mov_b32 s46, 256
    s_mov_b32 s47, 0x20000
    s_cmp_lt_u32 s2, 8
    s_cbranch_scc1 L_clear
    s_lshr_b32 s50, s2, 3
    s_sub_u32 s50, s50, 1                   ; t
    s_and_b32 s51, s2, 15
    s_and_b32 s52, s2, 2
    s_bitcmp1_b32 s50, 1
    s_cselect_b32 s53, {3*DS[1]}, {3*DS[0]}
    s_add_u32 s52, s52, s53
    s_bitcmp1_b32 s50, 2
    s_cselect_b32 s52, 0, s52
    s_lshl_b32 s52, s52, 21
    s_lshl_b32 s53, s51, 14
    s_add_u32 s52, s52, s53
    s_add_u32 s52, s52, {RECOFF+0x10000:#x}
    s_lshl_b32 s53, s51, 11
    s_and_b32 s53, s53, 0x1000
    s_lshl_b32 s51, s51, 8
    s_add_u32 s53, s53, s51
    s_getreg_b32 s40, hwreg(HW_REG_XCC_ID)
    s_and_b32 s40, s40, 7
    s_mov_b32 s54, 0
    s_waitcnt lgkmcnt(0)
    s_sub_u32 s55, s16, s20
    s_add_u32 s55, s55, 0x800
    s_bfe_u32 s55, s55, 0x1000c
    s_or_b32 s50, s50, s55                  ; x does not matter: its voters help with out
    s_bitcmp1_b32 s50, 0
    s_cselect_b32 s62, s20, s16
    s_cselect_b32 s63, s21, s17
    s_bitcmp1_b32 s50, 2
    s_cselect_b32 s62, s14, s62
    s_cselect_b32 s63, s15, s63
    s_add_u32 s62, s62, s52
    s_addc_u32 s63, s63, 0
    s_and_b32 s62, s62, 0xffffc000
    s_or_b32 s62, s62, s53
    s_lshr_b32 s56, s62, 19
    s_xor_b32 s56, s56, s40
    ; scalar loads answer in order and count 1 (dword) / 2 (dwordx2): a count of 2 = the first one was quicker""")
for r in range(RACES):
    f, g2 = (0, 8192) if r % 2 == 0 else (8192, 0)
    e(f"""    s_load_dword s64, s[62:63], {f} glc
    s_load_dwordx2 s[66:67], s[62:63], {g2} glc
    s_waitcnt lgkmcnt(2)
    s_nop 3
    s_getreg_b32 s65, hwreg(HW_REG_IB_STS, 8, 4)
    s_waitcnt lgkmcnt(0)
    s_cmp_{'eq' if r % 2 == 0 else 'lg'}_u32 s65, 2
    s_addc_u32 s54, s54, 0""")
e(f"""    s_mov_b32 s44, s12
    s_and_b32 s45, s13, 0xffff
    s_sub_u32 s55, {RACES}, s54
    s_bitcmp1_b32 s56, 2
    s_cselect_b32 s54, s54, s55
    s_mov_b64 exec, 1
    s_bitcmp1_b32 s50, 2
    s_cbranch_scc1 L_wsvote
    s_mul_i32 s50, s50, 6
    s_lshl_b32 s54, s54, s50
    s_lshl_b32 s40, s40, 8
    s_cmp_eq_u32 s2, 8
    s_cselect_b32 s55, s40, 0
    s_add_u32 s55, s55, 0x10000
    v_mov_b32 v4, s54
    v_mov_b32 v5, s55
    buffer_atomic_add_x2 v[4:5], off, s[44:47], 0 offset:128
L_warm:""")
if OPT.get('tlb'):
    e(f"""    s_mov_b64 exec, 0x1ff
    s_mov_b32 s41, {STRIPE}
    v_mul_lo_u32 v6, s41, v0
    s_mul_i32 s41, s2, 24576
    s_waitcnt lgkmcnt(0)
    buffer_load_dword v7, v6, s[20:23], s41 offen nt""")
e(f"""    ; walk phase 2 with EXEC=0 (every store branched over) so that it is in the instruction cache, then end
    s_setprio 0
    s_mov_b64 vcc, -1
    s_mov_b64 exec, 0
    s_branch L_store
L_wsvote:
    s_add_u32 s54, s54, 0x8000
    v_mov_b32 v4, s54
    buffer_atomic_add v4, off, s[44:47], 0 offset:64
    s_branch L_warm
L_clear:
    v_mov_b32 v8, 0
    v_mov_b32 v9, 0
    v_mov_b32 v10, 0
    v_mov_b32 v11, 0
    v_lshlrev_b32 v1, 4, v0
    s_lshl_b32 s53, s2, 12
    s_mov_b32 s34, 32768
    s_mov_b32 s35, 0x20000
    s_waitcnt lgkmcnt(0)
    s_add_u32 s32, s14, {RECOFF}
    s_addc_u32 s33, s15, 0
    s_and_b32 s32, s32, 0xffffc000
    s_and_b32 s33, s33, 0xffff
    s_mov_b32 s44, s12
    s_and_b32 s45, s13, 0xffff""")
for i in range(4):
    e(f"    buffer_store_dwordx4 v[8:11], v1, s[32:35], s53 offen offset:{i*1024} sc1")
e("""    v_mov_b32 v5, 0x10000
    s_waitcnt vmcnt(0)
    s_mov_b64 exec, 1
    buffer_atomic_add v5, off, s[44:47], 0
    s_branch L_warm""")

WUP, WUS, WD, SR = 16, 40, 52, 88
PR = [52+4*i for i in range(16)]
def so(i): return ['0', 's50', 's51', 's52'][i//4]
e(f"""    ; ================= sync wave =================
L_sync:
    s_load_dwordx2 s[24:25], s[0:1], 8
    s_load_dwordx2 s[28:29], s[0:1], 16
    s_load_dwordx4 s[12:15], s[0:1], 32
    v_lshlrev_b32 v1, 4, v0                 ; lane*16
    v_lshlrev_b32 v4, 2, v0                 ; lane*4
    v_and_b32 v9, 1, v0
    v_lshlrev_b32 v7, 13, v9
    v_and_b32 v6, 48, v0
    v_add_u32 v7, v7, v6
    v_lshlrev_b32 v9, 6, v9
    v_and_b32 v5, 31, v0
    v_lshrrev_b32 v6, 5, v0
    v_lshl_add_u32 v6, v5, 1, v6
    v_mul_u32_u24 v6, 72, v6
    v_lshlrev_b32 v2, 1, v0                 ; lane*2
    v_lshlrev_b32 v3, 4, v0
    s_mov_b32 s26, 4608
    s_mov_b32 s27, 0x20000
    s_mov_b32 s30, 4608
    s_mov_b32 s31, 0x20000
    s_mov_b32 s34, 32768
    s_mov_b32 s35, 0x20000
    s_mov_b32 s46, 256
    s_mov_b32 s47, 0x20000
    s_movk_i32 s50, 0x1000
    s_movk_i32 s51, 0x4000
    s_movk_i32 s52, 0x5000
    s_movk_i32 s53, 0x900
    s_mov_b32 s42, 0xffff0000
    s_and_b32 s43, s2, 127
    s_lshl_b32 s43, s43, 6
    s_lshr_b32 s55, s2, 7
    s_lshl_b32 s55, s55, 14
    s_add_u32 s43, s43, s55
    s_mov_b32 s54, {SPIN}
    s_mov_b32 s56, 0x00030003
    s_mov_b32 s57, 0x00030003
    s_mov_b32 s58, 0x36e38e39               ; 1/147456
    s_mov_b32 s59, 0xbfb8aa3b               ; -log2(e)
    s_waitcnt lgkmcnt(0)
    s_add_u32 s32, s14, {RECOFF}
    s_addc_u32 s33, s15, 0
    s_and_b32 s32, s32, 0xffffc000
    s_and_b32 s33, s33, 0xffff
    s_mov_b32 s44, s12
    s_and_b32 s45, s13, 0xffff
    s_mov_b64 exec, 0
    s_branch L_crit
L_arm:
    s_mov_b64 exec, -1
    s_setprio 3""")
for i in range(4):
    e(f"    buffer_load_dwordx4 v[{SR+4*i}:{SR+4*i+3}], v6, s[24:27], 0 offen offset:{16*i}")
e(f"    buffer_load_dwordx2 v[{SR+16}:{SR+17}], v6, s[24:27], 0 offen offset:64")
for i in range(12):
    e(f"    v_mov_b32 v{WUS+i}, 0")
RU = SR+20
def wu(op, reg, ad, off):
    if off < 4096: e(f"    {op} v{reg}, {ad}, s[28:31], 0 offen offset:{off}")
    else: e(f"    {op} v{reg}, {ad}, s[28:31], s53 offen offset:{off-2304}")
for r in range(12): wu("buffer_load_dword", RU+r, "v4", r*384)
for r in range(12): wu("buffer_load_short_d16_hi", WUS+r, "v2", r*384+256)
if OPT.get('lp', '1') == '1': e("    s_setprio 0")
e("""    s_waitcnt vmcnt(0)
    ; weights to fp32; 1/(H*W) folded into w_down, -log2(e) into w_up""")
for i in range(18):
    e(f"    v_lshlrev_b32 v{WD+2*i}, 16, v{SR+i}")
    e(f"    v_and_b32 v{WD+2*i+1}, s42, v{SR+i}")
for r in range(12):
    e(f"    v_lshlrev_b32 v{WUP+2*r}, 16, v{RU+r}")
    e(f"    v_and_b32 v{WUP+2*r+1}, s42, v{RU+r}")
for i in range(36): e(f"    v_mul_f32 v{WD+i}, s58, v{WD+i}")
for i in range(36): e(f"    v_mul_f32 v{WUP+i}, s59, v{WUP+i}")
if OPT.get('lp', '1') == '1': e("    s_setprio 3")
e(f"""L_flag:
    buffer_load_dword v5, v9, s[44:47], 0 offen sc1
    s_sub_u32 s54, s54, 1
    s_cbranch_scc1 L_flagok
    s_waitcnt vmcnt(0)
    v_cmp_gt_u32 vcc, 0x80000, v5
    s_cbranch_vccz L_flagok
    s_sleep 8
    s_branch L_flag
L_flagok:
    s_waitcnt vmcnt(0)
    s_getreg_b32 s55, hwreg(HW_REG_XCC_ID)
    v_readlane_b32 s37, v5, 1
    s_lshr_b32 s55, s55, 2
    s_lshr_b32 s38, s32, 21
    s_xor_b32 s55, s55, s38
    s_add_u32 s37, s37, {64-(16*RACES//2+1)}
    s_lshr_b32 s37, s37, 6
    s_xor_b32 s55, s55, s37
    s_and_b32 s55, s55, 1
    s_lshl_b32 s55, s55, 13
    v_add_u32 v1, s55, v1
    v_mov_b32 v11, 1.0
    v_lshlrev_b32 v2, 3, v0                 ; lane*8
    s_mov_b32 s54, {SPIN}
L_crit:
    s_cbranch_execz L_c1
    s_barrier                               ; B1
L_c1:
    ; sum the 8 waves' partials of this lane's 3 channels, project on w_down""")
for j in range(3):
    for q in range(2):
        b = SR+8*j+4*q
        e(f"    ds_read_b128 v[{b}:{b+3}], v3 offset:{j*PSTR+1024*q}")
def pk(d, x, y): e(f"    v_pk_add_f32 v[{d}:{d+1}], v[{x}:{x+1}], v[{y}:{y+1}]")
HP = SR+24
for j in range(3):
    b = SR+8*j
    e(f"    s_waitcnt lgkmcnt({4-2*j})")
    pk(b, b, b+2); pk(b+4, b+4, b+6)
    if j: e(f"    v_add_f32 v{12+2*(j-1)}, v{b-8}, v{b-7}")
    pk(b, b, b+4)
for i in range(6):
    e(f"    v_pk_mul_f32 v[{HP+2*i}:{HP+2*i+1}], v[12:13], v[{WD+2*i}:{WD+2*i+1}] op_sel_hi:[0,1]")
e(f"    v_add_f32 v12, v{SR+16}, v{SR+17}")
for j, src in ((1, 14), (2, 12)):
    for i in range(6):
        w = WD+12*j+2*i
        e(f"    v_pk_fma_f32 v[{HP+2*i}:{HP+2*i+1}], v[{src}:{src+1}], v[{w}:{w+1}], v[{HP+2*i}:{HP+2*i+1}] op_sel_hi:[0,1,1]")
for r in range(6): e(f"    v_permlane32_swap_b32 v{HP+r}, v{HP+r+6}")
for r in range(6): e(f"    v_add_f32 v{HP+r}, v{HP+r}, v{HP+r+6}")
for r in range(3): e(f"    v_permlane16_swap_b32 v{HP+r}, v{HP+r+3}")
for r in range(3): e(f"    v_add_f32 v{8+r}, v{HP+r}, v{HP+r+3}")
for ctl in ("row_ror:8", "row_ror:4", "row_ror:2", "row_ror:1"):
    for r in range(3):
        e(f"    v_add_f32_dpp v{8+r}, v{8+r}, v{8+r} {ctl} row_mask:0xf bank_mask:0xf")
e("""    s_cbranch_execz L_p0
    s_mov_b64 exec, s[56:57]
    buffer_store_dwordx4 v[8:11], v7, s[32:35], s43 offen sc1
    s_mov_b64 exec, -1
    s_waitcnt vmcnt(0)
L_poll:
    s_sub_u32 s54, s54, 1
    s_cbranch_scc1 L_gate""")
for i in range(16):
    e(f"    buffer_load_dwordx4 v[{PR[i]}:{PR[i]+3}], v1, s[32:35], {so(i)} offen offset:{(i%4)*1024} sc1")
    if i in (2, 8):
        e(f"L_p{0 if i == 2 else 1}:")
        e(f"    s_cbranch_execz L_p{1 if i == 2 else 2}")
e("L_p2:")
for i in range(1, 16):
    e(f"    s_waitcnt vmcnt({15-i})")
    a0, a1 = (PR[0], PR[0]+2) if i == 1 else (12, 14)
    pk(12, a0, PR[i]); pk(14, a1, PR[i]+2)
e(f"""    v_cmp_neq_f32 vcc, {f2u(16.0):#x}, v15
    s_cbranch_vccnz L_poll
L_gate:""")
for ctl in ("row_ror:4", "row_ror:8"):
    for j in range(3):
        e(f"    v_add_f32_dpp v{12+j}, v{12+j}, v{12+j} {ctl} row_mask:0xf bank_mask:0xf")
e("""    v_mov_b32 v15, v14
    s_nop 0
    v_permlane32_swap_b32 v12, v13
    v_permlane32_swap_b32 v14, v15
    s_nop 0
    v_add_f32 v12, v12, v13
    v_add_f32 v14, v14, v15
    s_nop 1
    v_permlane16_swap_b32 v12, v14
    s_nop 0
    v_add_f32 v8, v12, v14                  ; z_r, r = 3*(lane&3) + {0,2,1,2}[lane>>4]
    v_mul_f32 v9, s59, v8
    v_exp_f32 v9, v9
    s_nop 0
    v_add_f32 v9, 1.0, v9
    v_rcp_f32 v9, v9
    s_nop 0
    v_mul_f32 v8, v8, v9                    ; h = silu(z)
    s_nop 0""")
for r in range(12):
    e(f"    v_readlane_b32 s{60+r}, v8, {16*{0:0,1:2,2:1}[r % 3] + r//3}")
for r in range(12):
    sp = 60 + (r & ~1)
    w = WUP+2*r
    if r == 0:
        e(f"    v_pk_mul_f32 v[12:13], s[{sp}:{sp+1}], v[{w}:{w+1}] op_sel_hi:[0,1]")
        e(f"    v_pk_mul_f32 v[14:15], s[{sp}:{sp+1}], v[{WUS}:{WUS+1}]")
    elif r % 2 == 0:
        e(f"    v_pk_fma_f32 v[12:13], s[{sp}:{sp+1}], v[{w}:{w+1}], v[12:13] op_sel_hi:[0,1,1]")
        e(f"    v_pk_fma_f32 v[14:15], s[{sp}:{sp+1}], v[{WUS+r}:{WUS+r+1}], v[14:15]")
    else:
        e(f"    v_pk_fma_f32 v[12:13], s[{sp}:{sp+1}], v[{w}:{w+1}], v[12:13] op_sel:[1,0,0] op_sel_hi:[1,1,1]")
e("    v_add_f32 v14, v14, v15")
for j in range(3): e(f"    v_exp_f32 v{12+j}, v{12+j}")
for j in range(3): e(f"    v_add_f32 v{12+j}, 1.0, v{12+j}")
for j in range(3): e(f"    v_rcp_f32 v{12+j}, v{12+j}")
e(f"""    v_cvt_pk_bf16_f32 v13, v12, v13
    v_cvt_pk_bf16_f32 v14, v14, v14
    v_lshlrev_b32 v12, 16, v13
    v_and_b32 v13, s42, v13
    v_and_b32 v14, s42, v14
    ds_write_b64 v2, v[12:13] offset:{GOFF}
    ds_write_b32 v4, v14 offset:{GOFF+512}
    s_waitcnt lgkmcnt(0)
    s_cbranch_execz L_arm
    s_barrier                               ; B2
L_end:
    s_endpgm
.section .rodata,"a"
.p2align 6
.amdhsa_kernel standalone__channel_attn_se__vision_kernel
  .amdhsa_next_free_vgpr 162
  .amdhsa_next_free_sgpr 100
  .amdhsa_accum_offset 164
  .amdhsa_group_segment_fixed_size 0
  .amdhsa_kernarg_size 48
  .amdhsa_user_sgpr_count 2
  .amdhsa_user_sgpr_kernarg_segment_ptr 1
  .amdhsa_system_sgpr_workgroup_id_x 1
  .amdhsa_float_denorm_mode_32 3
.end_amdhsa_kernel""")
open(OUT, 'w').write('\n'.join(L) + '\n')
```
